```python
import torch

def _softmax(x, axis=-1):
    return torch.softmax(x, dim=axis)
def _gelu(x):
    return torch.nn.functional.gelu(x, approximate="tanh")
def _silu(x):
    return torch.nn.functional.silu(x)
def _sigmoid(x):
    return torch.sigmoid(x)
def _layernorm(x, axis=-1, eps=1e-5):
    m = x.mean(dim=axis, keepdim=True)
    v = x.var(dim=axis, keepdim=True, unbiased=False)
    return (x - m) / torch.sqrt(v + eps)
def _scatter_add(tgt, idx, src, axis=0):
    return tgt.clone().index_add_(axis, idx, src)
def _segment_sum(src, seg, n):
    out = torch.zeros((n,) + src.shape[1:], dtype=src.dtype)
    return out.index_add_(0, seg, src)
def _pad(x, pw):
    flat = tuple(v for pair in reversed(pw) for v in pair)
    return torch.nn.functional.pad(x, flat)

kernel_name = 'gated_mix__mha_block_cached__glu_gated_swiglu__decode'

def setup_inputs():

    _w = (lambda a: (lambda t: t.to(torch.bfloat16) if t.is_floating_point() else t)(torch.as_tensor(a)))
    def _A_setup():
        B, Sq, D = 1, 1, 512
        H, Sk, Dh = 32, 32768, 128
        return {
            "x": _w((lambda *s: torch.randn(*s, dtype=torch.bfloat16) * 0.05)(B, Sq, D)),
            "k_cache": _w((lambda *s: torch.randn(*s, dtype=torch.bfloat16) * 6.4)(B, H, Sk, Dh)),
            "v_cache": _w((lambda *s: torch.randn(*s, dtype=torch.bfloat16) * 0.2)(B, H, Sk, Dh)),
            "wq": _w((lambda *s: torch.randn(*s, dtype=torch.bfloat16) * 6.4)(D, H * Dh) * (D ** -0.5)),
            "wo": _w((lambda *s: torch.randn(*s, dtype=torch.bfloat16) * 0.2)(H * Dh, D) * ((H * Dh) ** -0.5)),
        }
    _A_in = _A_setup()

    def _B_setup():
        B, S, D, F = 1, 1, 512, 1792
        return {
            "x": _w((lambda *s: torch.randn(*s, dtype=torch.bfloat16) * 0.05)(B, S, D)),
            "w1": _w((lambda *s: torch.randn(*s, dtype=torch.bfloat16) * 0.8)(D, F) * (2.0 / D) ** 0.5),
            "w3": _w((lambda *s: torch.randn(*s, dtype=torch.bfloat16) * 0.8)(D, F) * (2.0 / D) ** 0.5),
            "w2": _w((lambda *s: torch.randn(*s, dtype=torch.bfloat16) * 0.8)(F, D) * (2.0 / F) ** 0.5),
        }
    _B_in = _B_setup()

    return {
        "A_x": _A_in["x"],
        "A_k_cache": _A_in["k_cache"],
        "A_v_cache": _A_in["v_cache"],
        "A_wq": _A_in["wq"],
        "A_wo": _A_in["wo"],
        "B_x": _B_in["x"],
        "B_w1": _B_in["w1"],
        "B_w3": _B_in["w3"],
        "B_w2": _B_in["w2"],
        "gate_w": _w((lambda *s: torch.randn(*s, dtype=torch.bfloat16) * 0.05)(512) * 16.0),
    }

def reference(A_x, A_k_cache, A_v_cache, A_wq, A_wo, B_x, B_w1, B_w3, B_w2, gate_w):
    def _A_ref(x, k_cache, v_cache, wq, wo):
        B, Sq, D = x.shape
        H, Dh = 32, 128
        q = (lambda x, *d: x.permute(*d))((x @ wq).reshape(B, Sq, H, Dh), 0, 2, 1, 3)
        scores = torch.einsum("bhqd,bhkd->bhqk", q, k_cache) * (Dh ** -0.5)
        p = _softmax(scores, axis=-1)
        o = torch.einsum("bhqk,bhkd->bhqd", p, v_cache)
        return (lambda x, *d: x.permute(*d))(o, 0, 2, 1, 3).reshape(B, Sq, H * Dh) @ wo

    def _B_ref(x, w1, w3, w2):
        gate = torch.einsum("bsd,df->bsf", x, w1)
        up = torch.einsum("bsd,df->bsf", x, w3)
        h = _silu(gate) * up
        out = torch.einsum("bsf,fd->bsd", h, w2)
        return out

    x = A_x
    g = _sigmoid((x * gate_w).sum(-1, keepdims=True))
    a = _A_ref(x, A_k_cache, A_v_cache, A_wq, A_wo)
    b = _B_ref(x, B_w1, B_w3, B_w2)
    return g * a + (1 - g) * b
```

```python
import sys
NAME = "gated_mix__mha_block_cached__glu_gated_swiglu__decode"

HEADER = """; Kernarg layout for this problem (104 bytes, ptrs only, base s[0:1]):
"""

HB = 0x00000
AP = 0x10000
BP = 0x20000
HL = 0x30000
ML = 0x40000
REF = 0x50000
RSTR = 4352
TUNE = 0x800000
STAMP = 0x20000000

NS = 9
SLOT = 16384
CTL = NS * SLOT
O_LANDED, O_WIN = 0, 8
O_FREE = 16
O_OK, O_PREADY, O_FOK, O_F = 32, 36, 40, 44
O_PDONE = 48
O_KDONE = 64
O_QDONE = 80
O_OST = 96
O_Q = 256
O_H = 512
O_SC = 1024
O_QP = O_SC + 6144
PSTR = 512
LDS_BYTES = CTL + O_SC + 8192

LOG2E = 0x3fb8aa3b
SCALE = 0x3db504f3
SPIN = 1000000


class G:
    def __init__(self):
        self.L = []
        self.n = 0

    def __call__(self, s):
        for line in s.strip().split("\n"):
            line = line.strip()
            if line:
                self.L.append(line if line.endswith(":") else "    " + line)

    def lab(self, p):
        self.n += 1
        return "L_%s_%d" % (p, self.n)


def gen(FT=19, base8=164, c0=16, per=12, dly=6, ka=50, late=250,
        lay="T2", hm="70c.279.0b8.6e0.2c0", sm="2.2.0", diag=0, pol="nt", wpol="nt", qpol="", fpol="", CSL=0, cal=-1,
        H1S=0, ASL=2, dbg=0, FS=14, FD=5, QF=8, F0=168, bK=170, FW=5, KEND=55, FR=1, FW0=16, tune=0, PF=1, MLP=88, VT=0, UN=0, TW=0, stat="", mul=10, sub=0):
    g = G()
    NB, SB = {"T1": ((17, 18, 19, 20, 21, 22), (14, 15, 16)),
              "T2": ((14, 18, 19, 20, 21, 22), (15, 16, 17)),
              "TQ": ((16, 17, 18, 19, 21, 22), (14, 15, 20)),
              "TR": ((15, 16, 17, 18, 19, 22), (14, 20, 21)),
              "TS": ((14, 17, 18, 19, 21, 22), (15, 16, 20)),
              "TC": ((14, 15, 16, 17, 18, 19), (20, 21, 22))}[lay]
    HM = [(int(x, 16) << 12) | (1 << (23 + i)) for i, x in enumerate(hm.split("."))]
    SM = [(int(x, 16) << 12) | (1 << SB[i]) for i, x in enumerate(sm.split("."))]
    FMIN, FMAX = 17, 24
    CP = list(range(c0, 126 - dly, per))
    assert len(CP) <= 16 and dly < per
    dg = diag or cal >= 0
    LOC = 0

    def stamp(k, wave=None):
        if not diag and k != cal:
            return
        if diag == 2 and k not in (0, 3, 7):
            return
        if diag == 3 and k not in (0, 3, 7, 10, 12, 14):
            return
        lab = g.lab("ns")
        if wave is not None:
            g("s_cmp_eq_u32 s3, %d" % wave)
            g("s_cbranch_scc0 %s" % lab)
        g("s_memrealtime s[%d:%d]" % (66 + 2 * k, 67 + 2 * k))
        g("s_waitcnt lgkmcnt(0)")
        g(lab + ":")

    def spin_guard(lab_loop):
        g("""
        s_add_u32 s60, s60, 1
        s_cmp_lt_u32 s60, %d
        s_cbranch_scc1 %s
        s_branch L_end
        """ % (SPIN, lab_loop))

    def lds_wait_flag(off, vt, sleep=1):
        a = g.lab("w"); b = g.lab("d")
        g("s_mov_b32 s60, 0")
        g(a + ":")
        g("""
        ds_read_b32 %s, v1 offset:%d
        s_waitcnt lgkmcnt(0)
        v_readfirstlane_b32 s61, %s
        s_cmp_lg_u32 s61, 0
        s_cbranch_scc1 %s
        """ % (vt, off, vt, b))
        if sleep:
            g("s_sleep %d" % sleep)
        spin_guard(a)
        g(b + ":")

    def lds_wait_ge(off, sreg, vt, sleep=1):
        a = g.lab("w"); b = g.lab("d")
        g("s_mov_b32 s60, 0")
        g(a + ":")
        g("""
        ds_read_b32 %s, v1 offset:%d
        s_waitcnt lgkmcnt(0)
        v_readfirstlane_b32 s61, %s
        s_cmp_ge_i32 s61, %s
        s_cbranch_scc1 %s
        """ % (vt, off, vt, sreg, b))
        if sleep:
            g("s_sleep %d" % sleep)
        spin_guard(a)
        g(b + ":")

    def lds_wait_sum3(off, want, vt, sleep=0):
        a = g.lab("w"); b = g.lab("d")
        g("s_mov_b32 s60, 0")
        g(a + ":")
        g("""
        ds_read_b96 v[%d:%d], v1 offset:%d
        s_waitcnt lgkmcnt(0)
        v_add3_u32 v%d, v%d, v%d, v%d
        s_nop 0
        v_readfirstlane_b32 s61, v%d
        s_cmp_eq_u32 s61, %d
        s_cbranch_scc1 %s
        """ % (vt, vt + 2, off, vt, vt, vt + 1, vt + 2, vt, want, b))
        if sleep:
            g("s_sleep %d" % sleep)
        spin_guard(a)
        g(b + ":")

    def wait_landed(vt):
        a = g.lab("wl"); b = g.lab("wd")
        g("""
        s_cmp_gt_i32 s59, s15
        s_cbranch_scc1 %s
        s_mov_b32 s60, 0
        """ % b)
        g(a + ":")
        g("""
        ds_read_b32 %s, v1 offset:%d
        s_waitcnt lgkmcnt(0)
        v_readfirstlane_b32 s59, %s
        s_cmp_gt_i32 s59, s15
        s_cbranch_scc1 %s
        """ % (vt, O_LANDED, vt, b))
        if CSL:
            g("s_sleep %d" % CSL)
        spin_guard(a)
        g(b + ":")

    def check_valid(regs, vt, lab_ok):
        regs = list(regs)
        cur = regs.pop(0)
        while regs:
            if len(regs) >= 2:
                g("v_max3_u32 %s, %s, %s, %s" % (vt, cur, regs[0], regs[1]))
                regs = regs[2:]
            else:
                g("v_max_u32 %s, %s, %s" % (vt, cur, regs[0]))
                regs = []
            cur = vt
        g("v_cmp_eq_u32 vcc, -1, %s" % cur)
        g("s_cbranch_vccz %s" % lab_ok)

    def xsum(regs, tmp, inst, op="v_add_f32"):
        for r, t in zip(regs, tmp):
            g("v_mov_b32 %s, %s" % (t, r))
        g("s_nop 1")
        for r, t in zip(regs, tmp):
            g("%s %s, %s" % (inst, r, t))
        g("s_nop 1")
        for r, t in zip(regs, tmp):
            g("%s %s, %s, %s" % (op, r, r, t))

    def rowred(v, op, shifts):
        for sh in shifts:
            g("s_nop 1")
            g("%s_dpp %s, %s, %s row_ror:%d row_mask:0xf bank_mask:0xf" % (op, v, v, v, sh))

    SEL = 240

    def selectors():
        g("""
        v_and_b32 v8, 1, v0
        v_cmp_eq_u32 vcc, 1, v8
        v_mov_b32 v9, 0x0c0c0100
        v_mov_b32 v10, 0x01000c0c
        v_mov_b32 v11, 0x0c0c0302
        v_mov_b32 v12, 0x03020c0c
        v_mov_b32 v13, 0x0c0c0c0c
        v_bfe_u32 v8, v0, 1, 2
        v_cndmask_b32 v9, v9, v10, vcc
        v_cndmask_b32 v11, v11, v12, vcc
        """)
        for m in range(4):
            g("v_cmp_eq_u32 vcc, %d, v8" % m)
            g("s_nop 1")
            g("v_cndmask_b32 v%d, v13, v9, vcc" % (SEL + m))
            g("v_cndmask_b32 v%d, v13, v11, vcc" % (SEL + 4 + m))

    def diag_ops(src, n, dst):
        for u in range(n):
            for m in range(4):
                g("v_perm_b32 v%d, v%d, v%d, v%d" % (dst + 4 * u + m, src + (u >> 1), src + (u >> 1), SEL + 4 * (u & 1) + m))

    def gather_cols(wsoff, nld, vaddr, d, tmp, sleep):
        a = g.lab("g"); b = g.lab("gd")
        g("""
        s_lshl_b32 s61, s5, 2
        s_add_u32 s61, s61, s42
        s_lshl_b32 s61, s61, 11
        s_add_u32 s61, s61, %d
        v_lshl_add_u32 %s, v0, 2, s61
        s_mov_b32 s60, 0
        """ % (wsoff, vaddr))
        g(a + ":")
        for j in range(nld):
            g("global_load_dword v%d, %s, s[40:41] offset:%d sc1" % (d + j, vaddr, 256 * j))
        g("s_waitcnt vmcnt(0)")
        check_valid(["v%d" % (d + i) for i in range(nld)], "v%d" % tmp, b)
        if sleep:
            g("s_sleep %d" % sleep)
        spin_guard(a)
        g(b + ":")
        regs = [d + i for i in range(nld)]
        while len(regs) > 1:
            nxt = []
            for i in range(0, len(regs) - 1, 2):
                g("v_add_f32 v%d, v%d, v%d" % (regs[i], regs[i], regs[i + 1]))
                nxt.append(regs[i])
            if len(regs) & 1:
                nxt.append(regs[-1])
            regs = nxt
        xsum(["v%d" % d], ["v%d" % tmp], "v_permlane16_swap_b32")
        xsum(["v%d" % d], ["v%d" % tmp], "v_permlane32_swap_b32")

    def rbf(v):
        g("v_cvt_pk_bf16_f32 %s, %s, %s" % (v, v, v))
        g("v_and_b32 %s, 0xffff0000, %s" % (v, v))

    if cal >= 0 or diag == 3:
        g("s_memrealtime s[98:99]")
    g("""
    s_cmp_ge_u32 s2, 256
    s_cbranch_scc1 L_exit
    v_lshrrev_b32 v2, 6, v0
    v_mov_b32 v1, %d
    v_readfirstlane_b32 s3, v2
    v_subrev_u32 v2, %d, v0
    v_and_b32 v0, 63, v0
    s_cmp_eq_u32 s3, 1
    s_cbranch_scc0 L_noinit
    v_lshl_add_u32 v3, v0, 2, v1
    v_mov_b32 v4, 0
    ds_write_b32 v3, v4
    s_waitcnt lgkmcnt(0)
    L_noinit:
    s_load_dwordx16 s[16:31], s[0:1], 0
    s_load_dwordx8 s[32:39], s[0:1], 64
    s_load_dwordx2 s[40:41], s[0:1], 96
    s_barrier
    """ % (CTL, 128 if PF == 2 else 64))
    if PF:
        if PF == 2:
            g("s_bfe_u32 s4, s2, 0x20003")
            g("v_lshl_add_u32 v2, v2, 2, s4")
        g("""
        s_getpc_b64 s[4:5]
        v_lshlrev_b32 v3, 7, v2
        v_cmp_gt_u32 vcc, (L_exit - %s_kernel) / 128, v2
        s_and_saveexec_b64 s[6:7], vcc
        s_cbranch_execz L_nopf
        global_load_dword v255, v3, s[4:5]
        L_nopf:
        s_mov_b64 exec, s[6:7]
        """ % NAME)
    if diag:
        for k in range(33, 49):
            g("s_mov_b64 s[%d:%d], 0" % (2 * k, 2 * k + 1))
    elif cal >= 0 and cal < 16:
        g("s_mov_b64 s[%d:%d], 0" % (66 + 2 * cal, 67 + 2 * cal))
    g("""
    s_and_b32 s42, s2, 31
    s_and_b32 s4, s2, 7
    s_lshl_b32 s4, s4, 2
    s_lshr_b32 s5, s42, 3
    s_or_b32 s4, s4, s5
    s_lshr_b32 s5, s2, 5
    s_cmp_eq_u32 s3, 0
    s_cbranch_scc0 L_notloader
    """)

    g("""
    s_setprio 3
    v_lshrrev_b32 v8, 4, v0
    v_lshlrev_b32 v9, 2, v8
    v_and_b32 v10, 15, v0
    v_xor_b32 v9, v9, v10
    v_lshlrev_b32 v8, 8, v8
    v_lshl_add_u32 v2, v9, 4, v8
    v_xor_b32 v3, 16, v2
    v_xor_b32 v4, 32, v2
    v_xor_b32 v5, 48, v2
    v_mov_b32 v7, 0
    v_mov_b32 v12, 0
    s_mov_b32 s7, 0
    """)
    if tune == 2:
        g("""
        s_waitcnt lgkmcnt(0)
        s_add_u32 s44, s40, %d
        s_addc_u32 s45, s41, 0
        s_load_dwordx8 s[48:55], s[44:45], 0
        s_waitcnt lgkmcnt(0)
        """ % (TUNE + 128))
    for i in range(8):
        g("s_bitcmp1_b32 s2, %d" % i)
        if tune == 2:
            g("s_cselect_b32 s8, s%d, 0" % (48 + i))
        else:
            g("s_cselect_b32 s8, 0x%x, 0" % (HM[2:] + HM[:2] + SM)[i])
        g("s_xor_b32 s7, s7, s8")
    g("""
    s_mov_b32 s9, 0
    s_mov_b32 s10, 0
    s_mov_b32 s11, %d
    s_mov_b32 s46, 0x10000000
    s_mov_b32 s47, 0x20000
    s_waitcnt lgkmcnt(0)
    s_mov_b32 s44, s18
    s_mov_b32 s45, s19
    """ % NS)
    stamp(0)

    def publish(c):
        g("v_add_u32 v8, %d, v7" % c)
        g("ds_write_b32 v1, v8 offset:%d" % O_LANDED)

    def ring_slow(lab, back):
        g(lab + ":")
        g("s_mov_b32 s60, 0")
        a = g.lab("rw")
        g(a + ":")
        g("""
        ds_read_b96 v[8:10], v1 offset:%d
        s_waitcnt lgkmcnt(0)
        v_add_u32 v9, 1, v9
        v_add_u32 v10, 2, v10
        v_min3_u32 v8, v8, v9, v10
        s_nop 0
        v_readfirstlane_b32 s11, v8
        s_add_u32 s11, s11, %d
        s_cmp_lt_u32 s9, s11
        s_cbranch_scc1 %s
        """ % (O_FREE, NS, back))
        if diag:
            g("s_add_u32 s96, s96, 1")
        spin_guard(a)

    g("L_ld_slot:")
    if dg and diag != 2:
        for k, n in ((12, 8), (13, 40), (14, 64), (9, 112), (10, 2)):
            if (not diag and k != cal) or (diag == 1 and k == 10):
                continue
            lab = g.lab("ns")
            g("s_cmp_eq_u32 s9, %d" % n)
            g("s_cbranch_scc0 %s" % lab)
            stamp(k)
            g(lab + ":")
    g("""
    s_cmp_lt_u32 s9, s11
    s_cbranch_scc0 L_ld_full
    L_ld_go:
    s_waitcnt lgkmcnt(%d)
    v_readfirstlane_b32 s15, v12
    ds_read_b32 v12, v1 offset:%d
    s_mov_b32 s13, s7
    """ % (2 if UN else 4, O_WIN))
    b = 0
    while b < 6:
        e = b
        while e + 1 < 6 and NB[e + 1] == NB[e] + 1:
            e += 1
        g("s_bfe_u32 s12, s9, 0x%x" % (b | ((e - b + 1) << 16)))
        g("s_lshl_b32 s12, s12, %d" % NB[b])
        g("s_xor_b32 s13, s13, s12")
        b = e + 1
    g("""
    s_brev_b32 s12, s9
    s_lshr_b32 s12, s12, 29
    s_add_u32 s15, s15, s12
    s_add_u32 s9, s9, 1
    s_mov_b32 s12, 0
    """)
    if diag:
        g("s_add_u32 s61, s15, %d" % F0)
        g("s_lshr_b32 s61, s61, 3")
        g("s_add_u32 s97, s97, s61")

    def body(F):
        lab = "L_ld_f%d" % F
        g(lab + ":")
        if UN:
            for T in range(4):
                g("s_add_u32 m0, s10, %d" % (T * 4096))
                g("s_xor_b32 s14, s13, %d" % (T * 4096))
                for u in range(4):
                    g("s_waitcnt vmcnt(%d)" % (F - 1))
                    if (4 * T + u) % 8 == (F - 1) % 8:
                        publish((4 * T + u - F + 1) // 4)
                    g("buffer_load_dwordx4 v%d, s[44:47], s14 offen offset:%d %s lds" % (2 + u, u * 1024, pol))
            g("v_add_u32 v7, 4, v7")
            return
        g("s_add_u32 m0, s10, s12")
        g("s_xor_b32 s14, s13, s12")
        for u in range(4):
            g("s_waitcnt vmcnt(%d)" % (F - 1))
            if u == (F - 1) % 4:
                publish((u - F + 1) // 4)
            g("buffer_load_dwordx4 v%d, s[44:47], s14 offen offset:%d %s lds" % (2 + u, u * 1024, pol))
        g("""
        v_add_u32 v7, 1, v7
        s_addk_i32 s12, 0x1000
        s_cmpk_lt_u32 s12, 0x4000
        s_cbranch_scc1 %s
        """ % lab)
    f0 = F0 // 8
    g("s_cmp_lt_i32 s15, %d" % (8 * f0 - F0))
    g("s_cbranch_scc1 L_ld_lo")
    if f0 < FMAX:
        g("s_cmp_ge_i32 s15, %d" % (8 * (f0 + 1) - F0))
        g("s_cbranch_scc1 L_ld_hi")
    body(f0)
    g("""
    L_ld_adv:
    s_add_u32 s10, s10, %d
    s_cmp_eq_u32 s10, %d
    s_cselect_b32 s10, 0, s10
    s_and_b32 s12, s9, 63
    s_cbranch_scc1 L_ld_slot
    s_branch L_ld_turn
    """ % (SLOT, NS * SLOT))
    g("L_ld_lo:")
    for F in range(f0 - 1, FMIN - 1, -1):
        if F > FMIN:
            g("s_cmp_lt_i32 s15, %d" % (8 * F - F0))
            g("s_cbranch_scc1 L_ld_t%d" % (F - 1))
        body(F)
        g("s_branch L_ld_adv")
        if F > FMIN:
            g("L_ld_t%d:" % (F - 1))
    g("L_ld_hi:")
    for F in range(f0 + 1, FMAX + 1):
        if F < FMAX:
            g("s_cmp_ge_i32 s15, %d" % (8 * (F + 1) - F0))
            g("s_cbranch_scc1 L_ld_t%d" % (F + 1))
        body(F)
        g("s_branch L_ld_adv")
        if F < FMAX:
            g("L_ld_t%d:" % (F + 1))
    ring_slow("L_ld_full", "L_ld_go")
    ring_slow("L_ld_full2", "L_ld_go2")
    g("""
    L_ld_turn:
    s_mov_b32 s44, s20
    s_mov_b32 s45, s21
    v_lshlrev_b32 v2, 4, v0
    v_mov_b32 v3, v2
    v_mov_b32 v4, v2
    v_mov_b32 v5, v2
    s_cmp_eq_u32 s9, 64
    s_cbranch_scc1 L_ld_slot
    v_lshrrev_b32 v8, 3, v0
    v_and_b32 v9, 7, v0
    v_lshlrev_b32 v8, 10, v8
    v_lshl_add_u32 v2, v9, 4, v8
    s_lshl_b32 s13, s4, 17
    s_lshl_b32 s14, s5, 7
    s_add_u32 s13, s13, s14
    s_mov_b32 s44, s24
    s_mov_b32 s45, s25
    s_mov_b32 s46, 0x400000
    """)
    stamp(2)
    g("""
    s_cmp_lt_u32 s9, s11
    s_cbranch_scc0 L_ld_full2
    L_ld_go2:
    """)
    assert FMIN <= FT <= FMAX
    for u in range(16):
        g("s_add_u32 m0, s10, %d" % (u * 1024))
        g("s_waitcnt vmcnt(%d)" % (FT - 1))
        if u % 4 == (FT - 1) % 4:
            publish((u - FT + 1) // 4)
        g("buffer_load_dwordx4 v2, s[44:47], s13 offen %s lds" % wpol)
        g("s_addk_i32 s13, 0x2000")
    for o in (20, 16, 8, 0):
        if o >= FT:
            continue
        g("s_waitcnt vmcnt(%d)" % o)
        publish(4 - o // 4)
        if o == 16:
            stamp(3)
        if o == 0:
            stamp(11)
    if diag == 3:
        g("s_mov_b64 s[82:83], s[98:99]")
    g("s_branch L_end")

    g("L_notloader:")
    g("""
    s_cmp_lt_u32 s3, 4
    s_cbranch_scc1 L_cons
    """)
    g("""
    s_sub_u32 s6, s3, 4
    v_lshrrev_b32 v10, 4, v0
    s_lshl_b32 s61, s6, 9
    s_lshl_b32 s62, s5, 4
    s_or_b32 s61, s61, s62
    v_lshl_add_u32 v2, v10, 7, s61
    v_and_b32 v11, 15, v0
    v_lshlrev_b32 v10, %d, v10
    v_lshl_add_u32 v3, v11, 4, v10
    s_lshl_b32 s61, s6, 21
    s_lshl_b32 s62, s4, 8
    s_add_u32 s61, s61, s62
    s_lshl_b32 s62, s5, 16
    s_or_b32 s61, s61, s62
    s_mov_b32 s54, 0x400000
    s_mov_b32 s55, 0x20000
    s_waitcnt lgkmcnt(0)
    s_mov_b32 s52, s22
    s_mov_b32 s53, s23
    """ % 19)
    if dbg & 256:
        g("""
        v_lshlrev_b32 v3, 4, v0
        s_lshl_b32 s61, s4, 17
        s_lshl_b32 s62, s6, 16
        s_or_b32 s61, s61, s62
        s_lshl_b32 s62, s5, 13
        s_or_b32 s61, s61, s62
        """)

    def qload(u):
        g("s_xor_b32 s62, s61, %d" % ((u << 10) if dbg & 256 else (u << 13) ^ (((u & 7) << 10) if dbg & 64 else 0)))
        if not dbg & 16 and not (dbg & 128 and u >= 8):
            g("buffer_load_dwordx4 v[%d:%d], v3, s[52:55], s62 offen %s" % (96 + 4 * (u & 15), 99 + 4 * (u & 15), qpol))
    assert QF <= 12
    for u in range(8):
        qload(u)
    for j in range(8):
        g("v_xor_b32 v4, %d, v2" % (16 * j))
        g("global_load_dwordx4 v[%d:%d], v4, s[16:17]" % (16 + 4 * j, 19 + 4 * j))
    selectors()
    g("s_waitcnt vmcnt(0)")
    issued = 8
    for u in range(64):
        a0 = 48 + 4 * (u & 7)
        for m in range(4):
            g("v_perm_b32 v%d, v%d, v%d, v%d" % (a0 + m, 16 + (u >> 1), 16 + (u >> 1), SEL + 4 * (u & 1) + m))
        g("s_waitcnt vmcnt(%d)" % (issued - 1 - max(u, 7)))
        n0 = issued
        while issued < 64 and issued - max(u, 7) - 1 < QF and issued - u < 14:
            qload(issued)
            issued += 1
        if n0 == issued:
            g("s_nop 0")
        g("v_mfma_f32_16x16x32_bf16 v[12:15], v[%d:%d], v[%d:%d], %s" % (
            a0, a0 + 3, 96 + 4 * (u & 15), 99 + 4 * (u & 15), "0" if u == 0 else "v[12:15]"))
    g("""
    s_lshl_b32 s61, s6, 9
    v_and_b32 v10, 15, v0
    v_bfe_u32 v11, v0, 4, 1
    v_lshlrev_b32 v10, 5, v10
    v_lshl_add_u32 v10, v11, 4, v10
    v_add3_u32 v10, s61, v10, v1
    s_lshl_b32 s61, s6, 2
    v_add_u32 v11, s61, v1
    v_mov_b32 v9, 1
    ds_write_b128 v10, v[12:15] offset:%d
    ds_write_b32 v11, v9 offset:%d
    """ % (O_QP, O_QDONE))
    stamp(8, 4)
    g("""
    s_cmp_eq_u32 s3, 4
    s_cbranch_scc1 L_aux
    s_branch L_ctl
    """)

    g("L_cons:")
    g("""
    s_lshr_b32 s58, s2, 3
    s_sub_u32 s61, s3, 1
    s_or_b32 s58, s58, s61
    s_waitcnt lgkmcnt(0)
    s_cmp_eq_u32 s58, 0
    s_cbranch_scc0 L_c_nc
    v_mov_b32 v12, -1
    v_mov_b32 v13, -1
    v_mov_b32 v14, -1
    v_mov_b32 v15, -1
    s_lshl_b32 s61, s2, 10
    v_lshl_add_u32 v8, v0, 4, s61
    """)
    for k in range(32 if LOC else 24):
        if not dbg & 8:
            g("global_store_dwordx4 v8, v[12:15], s[40:41] sc1")
        g("v_add_u32 v8, 0x2000, v8")
    g("""
    s_lshl_b32 s61, s2, 13
    s_add_u32 s61, s61, %d
    v_lshl_add_u32 v8, v0, 8, s61
    v_and_b32 v9, 15, v0
    v_lshl_add_u32 v9, v9, 3, s2
    v_mul_u32_u24 v9, %d, v9
    v_cmp_gt_u32 vcc, 32, v0
    v_add_u32 v9, %d, v9
    s_mov_b32 exec_hi, 0x%x
    v_cndmask_b32 v8, v9, v8, vcc
    global_store_dwordx4 v8, v[12:15], s[40:41] sc1
    s_mov_b32 exec_hi, -1
    s_nop 0
    L_c_nc:
    """ % (ML, RSTR, REF, (1 << len(CP)) - 1))
    if TW:
        g("""
        s_cmp_eq_u32 s3, 3
        s_cbranch_scc0 L_c_ntw
        s_lshl_b32 s61, s4, 23
        v_lshl_add_u32 v8, v0, 21, s61
        s_lshl_b32 s61, s4, 17
        v_mov_b32 v9, s61
        v_mov_b32 v10, 0
        """)
        if TW > 1:
            lds_wait_ge(O_LANDED, "%d" % TW, "v11", sleep=2)
        g("""
        s_mov_b64 exec, 15
        global_load_dword v254, v8, s[20:21] nt
        global_load_dword v254, v8, s[18:19] nt
        s_mov_b64 exec, 1
        global_load_dword v254, v9, s[24:25] nt
        global_load_dword v254, v10, s[36:37] nt
        global_load_dword v254, v10, s[28:29]
        global_load_dword v254, v10, s[30:31]
        global_load_dword v254, v10, s[32:33]
        s_mov_b64 exec, -1
        L_c_ntw:
        """)
    selectors()
    g("""
    v_and_b32 v13, 15, v0
    v_lshrrev_b32 v14, 4, v0
    v_and_b32 v15, 3, v13
    v_lshrrev_b32 v5, 2, v13
    v_lshl_add_u32 v15, v15, 2, v5
    v_xor_b32 v8, v13, v14
    v_lshlrev_b32 v8, 4, v8
    v_lshl_add_u32 v8, v15, 8, v8
    v_xor_b32 v9, 64, v8
    v_xor_b32 v10, 0x80, v8
    v_xor_b32 v11, 0xc0, v8
    v_lshlrev_b32 v12, 4, v0
    v_and_b32 v2, 1, v5
    v_lshl_add_u32 v2, v2, 2, v14
    v_lshlrev_b32 v2, 4, v2
    v_lshrrev_b32 v3, 1, v5
    v_lshl_add_u32 v2, v3, 3, v2
    v_add_u32 v2, v2, v1
    v_lshl_add_u32 v3, v3, 2, v14
    v_lshl_add_u32 v3, v3, 4, v1
    s_sub_u32 s9, s3, 1
    s_mul_i32 s10, s9, %d
    s_lshl_b32 s11, s9, 2
    v_add_u32 v4, s11, v1
    s_mov_b32 s13, %d
    s_mov_b32 s59, 0
    """ % (SLOT, SCALE))
    for r in list(range(80, 88)) + [248]:
        g("v_mov_b32 v%d, 0" % r)

    def ring_adv():
        g("""
        s_add_u32 s10, s10, %d
        s_cmp_ge_u32 s10, %d
        s_cselect_b32 s61, %d, 0
        s_sub_u32 s10, s10, s61
        """ % (3 * SLOT, NS * SLOT, NS * SLOT))

    def k_head():
        g("""
        s_lshl_b32 s15, s9, 2
        s_add_u32 s15, s15, 3
        v_add_u32 v224, s10, v8
        v_add_u32 v225, s10, v9
        v_add_u32 v226, s10, v10
        v_add_u32 v227, s10, v11
        s_lshl_b32 s61, s9, 7
        v_add_u32 v228, s61, v2
        s_add_u32 s9, s9, 3
        v_add_u32 v248, 3, v248
        """)
        wait_landed("v230")

    def kread(k, base=96):
        g("ds_read_b128 v[%d:%d], v%d offset:%d" % (base + 4 * k, base + 3 + 4 * k, 224 + (k & 3), 4096 * (k >> 2)))

    def k_round():
        g("""
        v_cvt_pk_bf16_f32 v230, v88, v89
        v_cvt_pk_bf16_f32 v231, v90, v91
        v_lshlrev_b32 v88, 16, v230
        v_and_b32 v89, 0xffff0000, v230
        v_lshlrev_b32 v90, 16, v231
        v_and_b32 v91, 0xffff0000, v231
        v_mul_f32 v88, s13, v88
        v_mul_f32 v89, s13, v89
        v_mul_f32 v90, s13, v90
        v_mul_f32 v91, s13, v91
        v_cvt_pk_bf16_f32 v230, v88, v89
        v_cvt_pk_bf16_f32 v231, v90, v91
        """)

    for st in range(2):
        k_head()
        for k in range(16):
            if k >= 8:
                g("s_waitcnt lgkmcnt(7)")
            kread(k, 96 + 64 * st)
        g("s_waitcnt lgkmcnt(0)")
        g("ds_write_b32 v4, v248 offset:%d" % O_FREE)
        ring_adv()
        if st == 0:
            g("""
            s_cmp_eq_u32 s58, 0
            s_cbranch_scc0 L_c_nf
            s_lshl_b32 s61, s2, 2
            v_mov_b32 v230, s61
            v_mov_b32 v231, 1
            s_mov_b64 exec, 1
            s_waitcnt vmcnt(0)
            global_store_dword v230, v231, s[38:39] sc1
            s_mov_b64 exec, -1
            """)
            g("L_c_nf:")
    a = g.lab("qw"); b = g.lab("qd")
    g("""
    v_and_b32 v15, 0x1ff, v12
    v_add_u32 v15, v15, v1
    v_and_b32 v6, 31, v0
    v_lshl_add_u32 v6, v6, 3, v1
    v_lshl_add_u32 v7, v14, 4, v1
    s_mov_b32 s60, 0
    """)
    g(a + ":")
    g("""
    ds_read_b64 v[16:17], v1 offset:%d
    s_waitcnt lgkmcnt(0)
    v_add_u32 v16, v16, v17
    s_nop 0
    v_readfirstlane_b32 s61, v16
    s_cmp_eq_u32 s61, 2
    s_cbranch_scc1 %s
    """ % (O_QDONE, b))
    spin_guard(a)
    g(b + ":")
    g("""
    ds_read_b128 v[16:19], v15 offset:%d
    ds_read_b128 v[20:23], v15 offset:%d
    s_waitcnt lgkmcnt(0)
    """ % (O_QP, O_QP + 512))
    for r in range(4):
        g("v_add_f32 v%d, v%d, v%d" % (16 + r, 16 + r, 20 + r))
    g("""
    v_cvt_pk_bf16_f32 v16, v16, v17
    v_cvt_pk_bf16_f32 v17, v18, v19
    ds_write_b64 v6, v[16:17] offset:%d
    s_waitcnt lgkmcnt(0)
    """ % O_Q)
    for j in range(4):
        g("ds_read_b128 v[%d:%d], v7 offset:%d" % (224 + 4 * j, 227 + 4 * j, O_Q + 64 * j))
    g("s_waitcnt lgkmcnt(0)")
    for T in range(4):
        g("v_cmp_eq_u32 vcc, %d, v5" % T)
        g("s_nop 1")
        for r in range(16):
            g("v_cndmask_b32 v%d, 0, v%d, vcc" % (16 + 16 * T + r, 224 + r))
    stamp(1, 1)
    g("""
    s_sub_u32 s61, s9, 6
    s_lshl_b32 s61, s61, 7
    v_add_u32 v228, s61, v2
    """)
    for st in range(2):
        for k in range(16):
            g("v_mfma_f32_16x16x32_bf16 v[88:91], v[%d:%d], v[%d:%d], %s" % (
                96 + 64 * st + 4 * k, 99 + 64 * st + 4 * k, 16 + 4 * k, 19 + 4 * k, "0" if k == 0 else "v[88:91]"))
        g("s_nop 7")
        k_round()
        g("ds_write_b64 v228, v[230:231] offset:%d" % (O_SC + 384 * st))

    g("L_k_loop:")
    k_head()
    for k in range(8):
        kread(k)
    for k in range(16):
        g("s_waitcnt lgkmcnt(%d)" % min(7, 15 - k))
        if k == 15:
            g("ds_write_b32 v4, v248 offset:%d" % O_FREE)
        g("v_mfma_f32_16x16x32_bf16 v[88:91], v[%d:%d], v[%d:%d], %s" % (
            96 + 4 * k, 99 + 4 * k, 16 + 4 * k, 19 + 4 * k, "0" if k == 0 else "v[88:91]"))
        if k < 8:
            kread(k + 8)
    ring_adv()
    g("s_nop 3")
    k_round()
    g("""
    s_cmp_lt_u32 s9, 64
    ds_write_b64 v228, v[230:231] offset:%d
    s_cbranch_scc1 L_k_loop
    v_mov_b32 v197, 1
    ds_write_b32 v4, v197 offset:%d
    """ % (O_SC, O_KDONE))
    lds_wait_flag(O_PREADY, "v198", sleep=0)

    g("L_v_loop:")
    g("""
    s_sub_u32 s61, s9, 64
    s_lshl_b32 s61, s61, 7
    v_add_u32 v196, s61, v3
    ds_read_b128 v[88:91], v196 offset:%d
    v_add_u32 v192, s10, v12
    s_lshl_b32 s15, s9, 2
    s_add_u32 s9, s9, 3
    v_add_u32 v248, 3, v248
    s_waitcnt lgkmcnt(0)
    """ % O_SC)
    diag_ops(88, 8, 160)
    g("""
    s_cmp_eq_u32 s9, 130
    s_cbranch_scc1 L_v_merge
    L_v_w0:
    """)
    if VT:
        for T in range(4):
            if T:
                g("s_add_u32 s15, s15, 1")
            wait_landed("v198")
            for r in range(4):
                d = 96 + 16 * T + 4 * r
                g("ds_read_b128 v[%d:%d], v192 offset:%d" % (d, d + 3, T * 4096 + 1024 * r))
            for r in range(4):
                d = 96 + 16 * T + 4 * r
                acc = 80 + 4 * (T & 1)
                A = 160 + 16 * (T >> 1) + 4 * r
                g("s_waitcnt lgkmcnt(%d)" % (3 - r))
                if r == 3 and T == 3:
                    g("ds_write_b32 v4, v248 offset:%d" % O_FREE)
                g("v_mfma_f32_16x16x32_bf16 v[%d:%d], v[%d:%d], v[%d:%d], v[%d:%d]" % (
                    acc, acc + 3, A, A + 3, d, d + 3, acc, acc + 3))
    else:
        for pr in range(2):
            g("s_add_u32 s15, s15, %d" % (1 + pr))
            wait_landed("v198")
            for r in range(4):
                for hf in range(2):
                    d = 96 + 32 * pr + 8 * r + 4 * hf
                    g("ds_read_b128 v[%d:%d], v192 offset:%d" % (d, d + 3, (2 * pr + hf) * 4096 + 1024 * r))
            k = 0
            for r in range(4):
                for hf in range(2):
                    d = 96 + 32 * pr + 8 * r + 4 * hf
                    acc = 80 + 4 * hf
                    A = 160 + 16 * pr + 4 * r
                    g("s_waitcnt lgkmcnt(%d)" % (7 - k))
                    if k == 7 and pr == 1:
                        g("ds_write_b32 v4, v248 offset:%d" % O_FREE)
                    g("v_mfma_f32_16x16x32_bf16 v[%d:%d], v[%d:%d], v[%d:%d], v[%d:%d]" % (
                        acc, acc + 3, A, A + 3, d, d + 3, acc, acc + 3))
                    k += 1
    ring_adv()
    g("""
    s_cmp_lt_u32 s9, 128
    s_cbranch_scc1 L_v_loop
    s_cmp_eq_u32 s9, 130
    s_nop 0
    """)
    for r in range(4):
        g("v_permlane32_swap_b32 v%d, v%d" % (84 + r, 88 + r))
    g("s_nop 1")
    for r in range(4):
        g("v_add_f32 v%d, v%d, v%d" % (80 + r, 80 + r, 88 + r))
    g("""
    s_mov_b32 exec_hi, 0
    s_cbranch_scc0 L_c_other
    v_mul_f32 v80, v80, v212
    v_mul_f32 v81, v81, v212
    v_mul_f32 v82, v82, v212
    v_mul_f32 v83, v83, v212
    v_cvt_pk_bf16_f32 v80, v80, v81
    v_cvt_pk_bf16_f32 v81, v82, v83
    v_min_u32 v80, -2, v80
    v_min_u32 v81, -2, v81
    """)
    if LOC:
        g("global_store_dwordx2 v15, v[80:81], s[40:41]")
    else:
        g("global_store_dwordx2 v13, v[80:81], s[40:41] sc1")
    g("""
    ds_write_b32 v1, v248 offset:%d
    s_mov_b32 exec_hi, -1
    """ % O_OST)
    stamp(4)
    g("s_branch L_hop1")

    def hop1_addr():
        g("""
        v_bfe_u32 v9, v0, 2, 2
        v_and_b32 v10, 3, v0
        v_lshl_add_u32 v9, v14, 3, v9
        v_lshlrev_b32 v9, 7, v9
        v_lshl_add_u32 v9, v10, 3, v9
        s_lshl_b32 s61, s3, 6
        s_add_u32 s61, s61, %d
        v_add_u32 v9, s61, v9
        s_lshl_b32 s61, s4, 11
        s_add_u32 s61, s61, %d
        v_and_b32 v10, 7, v0
        v_lshlrev_b32 v11, 8, v10
        v_lshl_add_u32 v11, v14, 4, v11
        v_and_b32 v10, 8, v0
        v_lshl_add_u32 v11, v10, 3, v11
        v_add_u32 v11, s61, v11
        s_lshl_b32 s62, s5, 13
        s_lshl_b32 s63, s3, 12
        s_add_u32 s62, s62, s63
        s_lshl_b32 s63, s4, 6
        s_add_u32 s62, s62, s63
        s_add_u32 s62, s62, %d
        v_and_b32 v6, 15, v0
        v_lshrrev_b32 v10, 5, v0
        v_lshlrev_b32 v10, 11, v10
        v_lshl_add_u32 v6, v6, 2, v10
        v_add_u32 v6, s62, v6
        """ % ((128 % NS) * SLOT - 64, HL if LOC else HB, AP - 4096))
    g("L_v_merge:")
    lastc = 127 % 3
    oth = [c for c in range(3) if c != lastc]
    g("""
    s_lshl_b32 s61, s4, 11
    s_lshl_b32 s62, s5, 8
    s_add_u32 s62, s62, s61
    v_lshlrev_b32 v13, 4, v13
    v_lshl_add_u32 v13, v14, 3, v13
    v_add_u32 v13, s62, v13
    v_add_u32 v15, %d, v13
    v_and_b32 v200, 0x1ff, v12
    v_add_u32 v200, v200, v1
    """ % HL)
    assert HB == 0 and lastc == 1
    hop1_addr()
    lds_wait_flag(O_FOK, "v204", sleep=0)
    lds_wait_sum3(O_PDONE, 2, 204)
    g("""
    ds_read_b128 v[204:207], v200 offset:%d
    ds_read_b128 v[208:211], v200 offset:%d
    ds_read_b32 v212, v1 offset:%d
    s_waitcnt lgkmcnt(0)
    """ % (O_SC + PSTR * oth[0], O_SC + PSTR * oth[1], O_F))
    for r in range(4):
        g("v_add_f32 v%d, v%d, v%d" % (204 + r, 204 + r, 208 + r))
    for r in range(4):
        g("v_add_f32 v%d, v%d, v%d" % (80 + r, 80 + r, 204 + r))
    g("s_branch L_v_w0")
    g("""
    L_c_other:
    s_sub_u32 s61, s3, 1
    s_mul_i32 s61, s61, %d
    v_add3_u32 v196, s61, v1, v12
    v_mov_b32 v197, 1
    ds_write_b128 v196, v[80:83] offset:%d
    ds_write_b32 v4, v197 offset:%d
    s_mov_b32 exec_hi, -1
    """ % (PSTR, O_SC, O_PDONE))
    g("""
    s_cmp_eq_u32 s3, 1
    s_cbranch_scc0 L_end
    """)
    hop1_addr()
    lds_wait_flag(O_OST, "v198", sleep=0)
    g("L_hop1:")
    a = g.lab("h1"); b = g.lab("h1d"); c = g.lab("h1c")

    def oloads():
        g("global_load_dwordx4 v[16:19], v11, s[40:41] sc1")
        g("global_load_dwordx4 v[20:23], v11, s[40:41] offset:128 sc1")
    oloads()
    for half in range(2):
        g("s_mov_b32 s15, %d" % (513 + 2 * half))
        wait_landed("v198")
        for j in (2 * half, 2 * half + 1):
            for t in range(2):
                for hh in range(2):
                    d = 96 + 16 * t + 4 * j + 2 * hh
                    g("ds_read_b64_tr_b16 v[%d:%d], v9 offset:%d" % (d, d + 1, 4096 * j + 512 * hh + 32 * t))
    g("s_mov_b32 s60, 0")
    g("s_branch %s" % c)
    g(a + ":")
    oloads()
    g(c + ":")
    g("s_waitcnt vmcnt(0)")
    check_valid(["v%d" % i for i in range(16, 24)], "v34", b)
    if H1S:
        g("s_sleep %d" % H1S)
    if LOC:
        g("""
        s_cmp_eq_u32 s60, %d
        s_cbranch_scc0 L_h_nf
        v_subrev_u32 v11, %d, v11
        s_cmp_eq_u32 s3, 2
        s_cbranch_scc0 L_h_nf
        s_mov_b32 exec_hi, 0
        global_store_dwordx2 v13, v[80:81], s[40:41] sc1
        s_mov_b32 exec_hi, -1
        L_h_nf:
        """ % (LOC, HL - HB))
    spin_guard(a)
    g(b + ":")
    g("s_waitcnt lgkmcnt(0)")
    stamp(5, 1)
    for jj in range(2):
        for t in range(2):
            for bb in range(2):
                acc = 40 + 8 * t + 4 * bb
                B = 96 + 16 * t + 4 * (2 * jj + bb)
                g("v_mfma_f32_16x16x32_bf16 v[%d:%d], v[%d:%d], v[%d:%d], %s" % (
                    acc, acc + 3, 16 + 4 * jj, 19 + 4 * jj, B, B + 3, "0" if jj == 0 else "v[%d:%d]" % (acc, acc + 3)))
    g("""
    s_mov_b32 vcc_lo, -1
    s_mov_b32 vcc_hi, 0
    s_nop 2
    v_add_f32 v40, v40, v41
    v_add_f32 v42, v42, v43
    v_add_f32 v44, v44, v45
    v_add_f32 v46, v46, v47
    v_add_f32 v48, v48, v49
    v_add_f32 v50, v50, v51
    v_add_f32 v52, v52, v53
    v_add_f32 v54, v54, v55
    v_cndmask_b32 v40, v44, v40, vcc
    v_cndmask_b32 v42, v46, v42, vcc
    v_cndmask_b32 v48, v52, v48, vcc
    v_cndmask_b32 v50, v54, v50, vcc
    v_add_f32 v40, v40, v42
    v_add_f32 v48, v48, v50
    s_nop 1
    v_permlane32_swap_b32 v40, v48
    s_nop 0
    v_add_f32 v36, v40, v48
    v_add_f32 v37, v40, v48
    s_nop 1
    v_permlane16_swap_b32 v36, v37
    s_mov_b32 exec_lo, 0xffff
    s_mov_b32 exec_hi, 0xffff
    v_add_f32 v36, v36, v37
    v_min_u32 v36, -2, v36
    global_store_dword v6, v36, s[40:41] sc1
    """)
    stamp(6, 1)
    if LOC:
        g("""
        s_cmp_eq_u32 s3, 2
        s_cbranch_scc0 L_end
        s_mov_b32 exec_lo, -1
        s_mov_b32 exec_hi, 0
        global_store_dwordx2 v13, v[80:81], s[40:41] sc1
        """)
    g("s_branch L_end")

    g("L_ctl:")
    if tune:
        g("""
        s_add_u32 s44, s40, %d
        s_addc_u32 s45, s41, 0
        s_load_dwordx4 s[48:51], s[44:45], 64
        s_waitcnt lgkmcnt(0)
        s_sub_u32 s48, s48, %d
        """ % (TUNE, F0))
    else:
        g("s_mov_b32 s48, %d" % (base8 - F0))
        g("s_mov_b32 s49, %d" % (bK - base8))
        g("s_mov_b32 s50, %d" % ka)
    g("""
    s_cmp_lt_u32 s42, %d
    s_cselect_b32 s14, s49, 0
    s_add_u32 s12, s14, s48
    v_mov_b32 v4, s12
    ds_write_b32 v1, v4 offset:%d
    """ % (0 if dbg & 1 else 28, O_WIN))
    lds_wait_ge(O_LANDED, "%d" % (4 * (c0 - 3)), "v8", sleep=4)
    a = g.lab("fl"); b = g.lab("fld")
    g("""
    v_and_b32 v8, 7, v0
    v_lshlrev_b32 v9, 2, v8
    v_mul_u32_u24 v3, %d, v8
    v_add_u32 v3, %d, v3
    s_and_b32 s61, s2, 7
    s_mul_i32 s61, s61, %d
    s_add_u32 s61, s61, %d
    v_mov_b32 v2, s61
    s_mov_b32 s60, 0
    """ % (RSTR, REF, RSTR, REF))
    g(a + ":")
    g("""
    global_load_dword v10, v9, s[38:39] sc1
    s_waitcnt vmcnt(0)
    v_cmp_eq_u32 vcc, 0, v10
    s_cbranch_vccz %s
    s_sleep 16
    """ % b)
    spin_guard(a)
    g(b + ":")
    g("""
    v_mov_b32 v10, 1
    ds_write_b32 v1, v10 offset:%d
    s_mov_b32 s7, %d
    s_lshr_b32 s9, s2, 3
    v_mov_b32 v5, %d
    L_t_loop:
    """ % (O_OK, 4 * c0, -late))
    lds_wait_ge(O_LANDED, "s7", "v8", sleep=1)
    g("""
    s_memrealtime s[10:11]
    s_add_u32 s7, s7, %d
    s_waitcnt lgkmcnt(0)
    s_min_u32 s10, s10, -2
    v_mov_b32 v12, s10
    s_cmp_eq_u32 s9, 13
    s_cbranch_scc0 L_t_nr
    s_mov_b64 exec, 1
    global_store_dword v2, v12, s[40:41] sc1
    s_mov_b64 exec, -1
    L_t_nr:
    """ % (4 * dly))
    lds_wait_ge(O_LANDED, "s7", "v8", sleep=2)
    g("""
    global_load_dword v4, v3, s[40:41] sc1
    v_add_u32 v2, %d, v2
    v_add_u32 v3, %d, v3
    s_cmp_lt_u32 s7, %d
    s_cselect_b32 s13, s14, 0
    s_add_u32 s13, s13, s48
    s_add_u32 s7, s7, %d
    s_waitcnt vmcnt(0)
    v_cmp_eq_u32 vcc, -1, v4
    v_sub_u32 v4, v12, v4
    s_nop 0
    v_cndmask_b32 v4, v4, v5, vcc
    """ % (8 * RSTR, 8 * RSTR, 4 * KEND, 4 * (per - dly)))
    rowred("v4", "v_add_u32", (1, 2, 4))
    g("""
    s_nop 0
    v_readfirstlane_b32 s12, v4
    s_max_i32 s12, s12, -100000
    s_min_i32 s12, s12, 100000
    s_mul_i32 s12, s12, s50
    s_ashr_i32 s12, s12, 11
    s_add_u32 s12, s12, s13
    v_mov_b32 v4, s12
    ds_write_b32 v1, v4 offset:%d
    s_cmp_le_u32 s7, %d
    s_cbranch_scc1 L_t_loop
    s_branch L_end
    """ % (O_WIN, 4 * CP[-1]))

    g("L_aux:")
    g("""
    v_mov_b32 v4, 0
    v_mov_b32 v5, 0
    v_mov_b32 v6, 0
    v_mov_b32 v7, 0
    s_mov_b32 s12, 0x%x
    s_cmp_lt_u32 s42, %d
    s_cbranch_scc0 L_a_mid
    s_mov_b32 s44, s28
    s_mov_b32 s45, s29
    s_mov_b32 s46, 0x1c0000
    s_mov_b32 s47, 0x20000
    s_mov_b32 s48, s30
    s_mov_b32 s49, s31
    s_mov_b32 s50, 0x1c0000
    s_mov_b32 s51, 0x20000
    s_mov_b32 s52, s32
    s_mov_b32 s53, s33
    s_mov_b32 s54, 0x1c0000
    s_mov_b32 s55, 0x20000
    v_lshrrev_b32 v10, 3, v0
    v_lshlrev_b32 v2, 7, v10
    v_and_b32 v11, 7, v0
    v_mul_u32_u24 v10, %d, v10
    v_lshl_add_u32 v3, v11, 4, v10
    s_lshl_b32 s8, s42, 7
    s_mov_b32 s7, %d
    """ % (LOG2E | 0x80000000, 0 if dbg & 1 else 28, 64 * 3584, 4 * FS))
    for r in range(12, 20):
        g("v_mov_b32 v%d, 0" % r)
    g("s_mov_b32 s9, 0")
    g("L_f_loop:")
    if FR:
        g("s_xor_b32 s10, s9, s5")
    else:
        g("s_mov_b32 s10, s9")
    g("""
    s_lshl_b32 s11, s10, 4
    v_add_u32 v9, s11, v2
    s_mul_i32 s10, s10, %d
    s_add_u32 s10, s10, s8
    """ % (8 * 3584))
    lds_wait_ge(O_LANDED, "s7", "v8", sleep=ASL)
    g("global_load_dwordx4 v[20:23], v9, s[16:17]")
    g("s_cmp_eq_u32 s9, 0")
    g("s_cbranch_scc1 L_f_first")
    for w_ in (FW, FW0):
        for u in range(8):
            if w_ < 16:
                g("s_waitcnt vmcnt(%d)" % (w_ - 1))
            g("buffer_load_dwordx4 v[%d:%d], v3, s[44:47], s10 offen %s" % (128 + 8 * u, 131 + 8 * u, fpol))
            if w_ < 16:
                g("s_waitcnt vmcnt(%d)" % (w_ - 1))
            g("buffer_load_dwordx4 v[%d:%d], v3, s[48:51], s10 offen %s" % (132 + 8 * u, 135 + 8 * u, fpol))
            g("s_add_u32 s10, s10, 3584")
        if w_ is FW and "L_f_first:" not in g.L:
            g("s_branch L_f_j")
            g("L_f_first:")
            g("""
            v_lshrrev_b32 v10, 3, v0
            v_lshlrev_b32 v10, 13, v10
            v_lshl_add_u32 v10, v11, 4, v10
            s_lshl_b32 s61, s42, 16
            s_lshl_b32 s62, s5, 7
            s_add_u32 s61, s61, s62
            s_add_u32 s62, s61, 4096
            """)
            for u in range(8):
                if FW0 < 16:
                    g("s_waitcnt vmcnt(%d)" % (FW0 - 1))
                g("buffer_load_dwordx4 v[%d:%d], v10, s[52:55], %s offen offset:%d %s" % (
                    192 + 4 * u, 195 + 4 * u, "s61" if u < 4 else "s62", 1024 * (u & 3), wpol))
    g("""
    L_f_j:
    s_add_u32 s9, s9, 1
    s_add_u32 s7, s7, %d
    s_waitcnt vmcnt(16)
    """ % (4 * FD))
    diag_ops(20, 8, 64)
    g("s_waitcnt vmcnt(0)")
    for u in range(8):
        g("v_mfma_f32_16x16x32_bf16 v[12:15], v[%d:%d], v[%d:%d], v[12:15]" % (
            64 + 4 * u, 67 + 4 * u, 128 + 8 * u, 131 + 8 * u))
        g("v_mfma_f32_16x16x32_bf16 v[16:19], v[%d:%d], v[%d:%d], v[16:19]" % (
            64 + 4 * u, 67 + 4 * u, 132 + 8 * u, 135 + 8 * u))
    g("""
    s_cmp_lt_u32 s9, %d
    s_cbranch_scc1 L_f_loop
    s_nop 5
    """ % (1 if dbg & 32 else 8))
    assert FS + 7 * FD <= 60
    for r in range(8):
        g("v_permlane32_swap_b32 v%d, v%d" % (12 + r, 24 + r))
    g("s_nop 1")
    for r in range(8):
        g("v_add_f32_dpp v%d, v%d, v%d row_ror:8 row_mask:0xf bank_mask:0xf" % (12 + r, 24 + r, 12 + r))
    for r in range(8):
        rbf("v%d" % (12 + r))
    for r in range(4):
        g("v_mul_f32 v%d, s12, v%d" % (20 + r, 12 + r))
    for r in range(4):
        g("v_exp_f32 v%d, v%d" % (20 + r, 20 + r))
    g("s_nop 0")
    for r in range(4):
        g("v_add_f32 v%d, 1.0, v%d" % (20 + r, 20 + r))
    for r in range(4):
        g("v_rcp_f32 v%d, v%d" % (20 + r, 20 + r))
    g("s_nop 0")
    for r in range(4):
        g("v_mul_f32 v%d, v%d, v%d" % (12 + r, 12 + r, 20 + r))
    for r in range(4):
        rbf("v%d" % (12 + r))
    for r in range(4):
        g("v_mul_f32 v%d, v%d, v%d" % (12 + r, 12 + r, 16 + r))
    g("""
    v_cvt_pk_bf16_f32 v12, v12, v13
    v_cvt_pk_bf16_f32 v13, v14, v15
    v_lshrrev_b32 v9, 4, v0
    v_lshlrev_b32 v8, 4, v11
    v_lshl_add_u32 v8, v9, 3, v8
    v_add_u32 v8, v8, v1
    v_lshrrev_b32 v9, 3, v0
    v_lshl_add_u32 v9, v9, 4, v1
    s_mov_b32 exec_lo, 0x00ff00ff
    s_mov_b32 exec_hi, 0
    ds_write_b64 v8, v[12:13] offset:%d
    s_mov_b64 exec, -1
    s_waitcnt lgkmcnt(0)
    ds_read_b128 v[20:23], v9 offset:%d
    s_waitcnt lgkmcnt(0)
    """ % (O_H, O_H))
    diag_ops(20, 8, 64)
    g("s_waitcnt vmcnt(0)")
    g("s_nop 0")
    for u in range(8):
        g("v_mfma_f32_16x16x32_bf16 v[4:7], v[%d:%d], v[%d:%d], %s" % (
            64 + 4 * u, 67 + 4 * u, 192 + 4 * u, 195 + 4 * u, "0" if u == 0 else "v[4:7]"))
    g("s_nop 7")
    for r in range(4):
        g("v_permlane32_swap_b32 v%d, v%d" % (4 + r, 16 + r))
    g("s_nop 1")
    for r in range(4):
        g("v_add_f32_dpp v%d, v%d, v%d row_ror:8 row_mask:0xf bank_mask:0xf" % (4 + r, 16 + r, 4 + r))
    for r in range(4):
        g("v_min_u32 v%d, -2, v%d" % (4 + r, 4 + r))
    g("""
    s_cmp_lt_u32 s42, 4
    s_cbranch_scc0 L_a_mid
    v_lshlrev_b32 v9, 4, v0
    global_load_dwordx4 v[20:23], v9, s[16:17]
    global_load_dwordx4 v[24:27], v9, s[34:35]
    s_waitcnt vmcnt(0)
    """)
    for r in range(4):
        g("v_lshlrev_b32 v%d, 16, v%d" % (28 + 2 * r, 20 + r))
        g("v_and_b32 v%d, 0xffff0000, v%d" % (29 + 2 * r, 20 + r))
        g("v_lshlrev_b32 v%d, 16, v%d" % (36 + 2 * r, 24 + r))
        g("v_and_b32 v%d, 0xffff0000, v%d" % (37 + 2 * r, 24 + r))
    for r in range(8):
        g("v_mul_f32 v%d, v%d, v%d" % (28 + r, 28 + r, 36 + r))
    for r in range(8):
        rbf("v%d" % (28 + r))
    for r in range(4):
        g("v_add_f32 v%d, v%d, v%d" % (28 + r, 28 + r, 32 + r))
    g("""
    v_add_f32 v28, v28, v29
    v_add_f32 v30, v30, v31
    v_add_f32 v28, v28, v30
    """)
    rowred("v28", "v_add_f32", (1, 2, 4, 8))
    xsum(["v28"], ["v29"], "v_permlane16_swap_b32")
    xsum(["v28"], ["v29"], "v_permlane32_swap_b32")
    rbf("v28")
    g("""
    v_mul_f32 v28, s12, v28
    v_exp_f32 v28, v28
    s_nop 0
    v_add_f32 v28, 1.0, v28
    v_rcp_f32 v2, v28
    s_nop 0
    """)
    rbf("v2")
    g("v_sub_f32 v3, 1.0, v2")
    rbf("v3")

    g("L_a_mid:")
    if diag == 1:
        stamp(10)
    g("""
    s_mov_b32 s12, 0x%x
    v_lshl_add_u32 v8, v0, 4, v1
    """ % LOG2E)
    lds_wait_flag(O_OK, "v12", sleep=ASL)
    lds_wait_sum3(O_KDONE, 3, 12, sleep=1)
    for k in range(8):
        g("ds_read_b128 v[%d:%d], v8 offset:%d" % (16 + 4 * k, 19 + 4 * k, O_SC + 1024 * k))
    for k in range(8):
        g("s_waitcnt lgkmcnt(%d)" % (7 - k))
        for r in range(4):
            g("v_lshlrev_b32 v%d, 16, v%d" % (64 + 8 * k + 2 * r, 16 + 4 * k + r))
            g("v_and_b32 v%d, 0xffff0000, v%d" % (65 + 8 * k + 2 * r, 16 + 4 * k + r))
        for r in range(4):
            if k == 0 and r < 2:
                g("v_max_f32 v%d, v%d, v%d" % (12 + r, 64 + 2 * r, 65 + 2 * r))
            else:
                g("v_max3_f32 v%d, v%d, v%d, v%d" % (12 + (r & 1), 12 + (r & 1), 64 + 8 * k + 2 * r, 65 + 8 * k + 2 * r))
    g("v_max_f32 v12, v12, v13")
    rowred("v12", "v_max_f32", (1, 2, 4, 8))
    xsum(["v12"], ["v13"], "v_permlane16_swap_b32", "v_max_f32")
    xsum(["v12"], ["v13"], "v_permlane32_swap_b32", "v_max_f32")
    g("""
    v_mul_f32 v14, s12, v12
    v_mov_b32 v13, 0
    v_mov_b32 v15, 0
    """)
    for k in range(8):
        for r in range(8):
            g("v_fma_f32 v%d, v%d, s12, -v14" % (64 + 8 * k + r, 64 + 8 * k + r))
        for r in range(8):
            g("v_exp_f32 v%d, v%d" % (64 + 8 * k + r, 64 + 8 * k + r))
        for r in range(4):
            g("v_cvt_pk_bf16_f32 v%d, v%d, v%d" % (128 + 4 * k + r, 64 + 8 * k + 2 * r, 65 + 8 * k + 2 * r))
        g("ds_write_b128 v8, v[%d:%d] offset:%d" % (128 + 4 * k, 131 + 4 * k, O_SC + 1024 * k))
        for r in range(4):
            g("v_add_f32 v13, v13, v%d" % (64 + 8 * k + 2 * r))
            g("v_add_f32 v15, v15, v%d" % (65 + 8 * k + 2 * r))
    g("""
    v_mov_b32 v11, 1
    ds_write_b32 v1, v11 offset:%d
    v_add_f32 v13, v13, v15
    """ % O_PREADY)
    rowred("v13", "v_add_f32", (1, 2, 4, 8))
    xsum(["v13"], ["v15"], "v_permlane16_swap_b32")
    xsum(["v13"], ["v15"], "v_permlane32_swap_b32")
    a = g.lab("ml"); b = g.lab("mld")
    g("""
    s_lshl_b32 s62, s4, 11
    s_add_u32 s62, s62, %d
    s_lshl_b32 s63, s5, 8
    s_add_u32 s63, s63, s62
    v_mov_b32 v11, s63
    v_min_u32 v16, -2, v12
    v_min_u32 v17, -2, v13
    v_and_b32 v15, 7, v0
    v_lshl_add_u32 v15, v15, 8, s62
    s_mov_b64 exec, 1
    global_store_dwordx2 v11, v[16:17], s[40:41] sc1
    s_mov_b64 exec, -1
    """ % ML)
    lds_wait_ge(O_LANDED, "%d" % (4 * MLP), "v18", sleep=8)
    g("s_mov_b32 s60, 0")
    g(a + ":")
    g("""
    global_load_dwordx2 v[18:19], v15, s[40:41] sc1
    s_waitcnt vmcnt(0)
    """)
    check_valid(["v18", "v19"], "v20", b)
    g("s_sleep 16")
    spin_guard(a)
    g(b + ":")
    g("v_mov_b32 v20, v18")
    rowred("v20", "v_max_f32", (1, 2, 4))
    g("""
    v_sub_f32 v21, v18, v20
    v_sub_f32 v22, v12, v20
    v_mul_f32 v21, s12, v21
    v_mul_f32 v22, s12, v22
    v_exp_f32 v21, v21
    v_exp_f32 v22, v22
    s_nop 0
    v_mul_f32 v21, v21, v19
    """)
    rowred("v21", "v_add_f32", (1, 2, 4))
    g("""
    v_rcp_f32 v21, v21
    v_mov_b32 v11, 1
    v_mul_f32 v22, v22, v21
    ds_write_b32 v1, v22 offset:%d
    ds_write_b32 v1, v11 offset:%d
    s_lshl_b32 s61, s5, 13
    s_lshl_b32 s62, s42, 6
    s_add_u32 s61, s61, s62
    s_add_u32 s61, s61, %d
    v_bfe_u32 v8, v0, 1, 2
    v_and_b32 v9, 1, v0
    v_lshlrev_b32 v8, 11, v8
    v_lshl_add_u32 v8, v9, 5, v8
    v_and_b32 v9, 16, v0
    v_add3_u32 v8, v8, v9, s61
    """ % (O_F, O_FOK, BP))
    g("""
    s_lshl_b32 s61, s5, 2
    s_add_u32 s61, s61, s42
    s_lshl_b32 s62, s61, 11
    s_add_u32 s62, s62, %d
    v_lshl_add_u32 v9, v0, 2, s62
    s_lshl_b32 s61, s61, 5
    v_lshl_add_u32 v11, v0, 1, s61
    v_mov_b32 v21, 0
    s_mov_b32 s7, 0
    """ % BP)
    lds_wait_ge(O_LANDED, "512", "v18", sleep=1)
    g("""
    s_mov_b32 exec_lo, 0x00ff00ff
    s_mov_b32 exec_hi, 0
    global_store_dwordx4 v8, v[4:7], s[40:41] sc1
    s_mov_b64 exec, -1
    s_cmp_lt_u32 s42, 4
    s_cbranch_scc0 L_end
    """)
    a = g.lab("g"); b = g.lab("gd")
    g("L_fin:")
    g("s_mov_b32 s60, 0")
    g(a + ":")
    for j in range(8):
        g("global_load_dword v%d, v9, s[40:41] offset:%d sc1" % (12 + j, 256 * j))
    g("s_waitcnt vmcnt(0)")
    check_valid(["v%d" % (12 + i) for i in range(8)], "v10", b)
    spin_guard(a)
    g(b + ":")
    g("""
    v_add_f32 v12, v12, v13
    v_add_f32 v14, v14, v15
    v_add_f32 v16, v16, v17
    v_add_f32 v18, v18, v19
    v_add_f32 v12, v12, v14
    v_add_f32 v16, v16, v18
    v_add_f32 v13, v12, v16
    v_add_f32 v12, v12, v16
    s_nop 1
    v_permlane16_swap_b32 v12, v13
    s_nop 0
    v_add_f32 v14, v12, v13
    v_add_f32 v12, v12, v13
    s_nop 1
    v_permlane32_swap_b32 v12, v14
    s_cmp_eq_u32 s7, 0
    v_add_f32 v12, v12, v14
    """)
    rbf("v12")
    g("v_mul_f32 v12, v12, v3")
    rbf("v12")
    g("""
    v_add_f32 v21, v12, v21
    s_cbranch_scc0 L_fin_out
    s_mov_b32 s7, 1
    v_mov_b32 v3, v2
    v_subrev_u32 v9, %d, v9
    s_branch L_fin
    L_fin_out:
    v_cvt_pk_bf16_f32 v12, v21, v21
    s_mov_b64 exec, 0xffff
    global_store_short v11, v12, s[36:37]
    """ % (BP - AP))
    stamp(7)
    g("L_end:")
    if cal >= 0 and stat:
        g("""
        s_cmp_eq_u32 s3, 0
        s_cbranch_scc0 L_exit
        s_mov_b64 exec, 1
        s_lshl_b32 s61, s2, 3
        s_add_u32 s61, s61, %d
        v_mov_b32 v2, s61
        v_mov_b32 v4, s98
        v_mov_b32 v5, s%d
        global_store_dwordx2 v2, v[4:5], s[40:41] sc1
        s_mov_b64 exec, -1
        s_cmp_eq_u32 s2, 0
        s_cbranch_scc0 L_exit
        s_mov_b32 s60, 0
        L_cal0:
        s_memrealtime s[62:63]
        s_waitcnt lgkmcnt(0)
        s_sub_u32 s62, s62, s98
        s_cmp_ge_u32 s62, 12000
        s_cbranch_scc1 L_cal1
        s_add_u32 s60, s60, 1
        s_cmp_lt_u32 s60, 100000
        s_cbranch_scc1 L_cal0
        L_cal1:
        v_lshlrev_b32 v2, 5, v0
        v_add_u32 v2, %d, v2
        global_load_dwordx4 v[4:7], v2, s[40:41] sc1
        global_load_dwordx4 v[8:11], v2, s[40:41] offset:16 sc1
        s_waitcnt vmcnt(0)
        """ % (STAMP, 66 + 2 * cal, STAMP))
        for r in range(4, 12):
            g("v_subrev_u32 v%d, s98, v%d" % (r, r))
        op = {"max": "v_max_i32", "min": "v_min_i32", "mean": "v_add_u32"}[stat]
        for dst, o in ((4, "v_min_i32"), (5, op)):
            g("%s v%d, v%d, v%d" % (o, dst, dst, dst + 2))
            g("%s v%d, v%d, v%d" % (o, dst + 4, dst + 4, dst + 6))
            g("%s v%d, v%d, v%d" % (o, dst, dst, dst + 4))
            rowred("v%d" % dst, o, (1, 2, 4, 8))
            xsum(["v%d" % dst], ["v12"], "v_permlane16_swap_b32", o)
            xsum(["v%d" % dst], ["v12"], "v_permlane32_swap_b32", o)
        g("""
        s_nop 1
        v_readfirstlane_b32 s10, v4
        v_readfirstlane_b32 s11, v5
        s_ashr_i32 s11, s11, %d
        s_sub_u32 s11, s11, s10
        s_sub_u32 s11, s11, %d
        s_mul_i32 s11, s11, %d
        s_max_i32 s11, s11, 0
        s_min_i32 s11, s11, 30000
        s_add_u32 s61, s11, s10
        s_add_u32 s61, s61, 15000
        s_mov_b32 s60, 0
        L_cal:
        s_memrealtime s[62:63]
        s_waitcnt lgkmcnt(0)
        s_sub_u32 s62, s62, s98
        s_cmp_ge_u32 s62, s61
        s_cbranch_scc1 L_exit
        s_add_u32 s60, s60, 1
        s_cmp_lt_u32 s60, 100000
        s_cbranch_scc1 L_cal
        """ % (8 if stat == "mean" else 0, sub, mul))
    elif cal >= 0:
        g("""
        s_cmp_eq_u32 s%d, 0
        s_cbranch_scc1 L_exit
        s_sub_u32 s61, s%d, s98
        s_add_u32 s61, s61, 15000
        s_mov_b32 s60, 0
        L_cal:
        s_memrealtime s[62:63]
        s_waitcnt lgkmcnt(0)
        s_sub_u32 s62, s62, s98
        s_cmp_ge_u32 s62, s61
        s_cbranch_scc1 L_exit
        s_add_u32 s60, s60, 1
        s_cmp_lt_u32 s60, 100000
        s_cbranch_scc1 L_cal
        """ % (66 + 2 * cal, 66 + 2 * cal))
    if diag:
        g("""
        s_mov_b32 exec_lo, 1
        s_mov_b32 exec_hi, 0
        s_lshl_b32 s61, s2, 7
        s_add_u32 s61, s61, %d
        v_mov_b32 v2, s61
        """ % STAMP)
        for k in range(16):
            lab = g.lab("st")
            g("""
            s_or_b32 s61, s%d, s%d
            s_cbranch_scc0 %s
            v_mov_b32 v4, s%d
            v_mov_b32 v5, s%d
            global_store_dwordx2 v2, v[4:5], s[40:41] offset:%d
            s_nop 1
            """ % (66 + 2 * k, 67 + 2 * k, lab, 66 + 2 * k, 67 + 2 * k, 8 * k))
            g(lab + ":")
    g("L_exit:")
    g("s_endpgm")

    out = HEADER
    out += "; @launch grid=(256,1,1) block=(384,1,1) lds=%d\n" % LDS_BYTES
    out += '.amdgcn_target "amdgcn-amd-amdhsa--gfx950"\n.text\n.globl %s_kernel\n.p2align 8\n.type %s_kernel,@function\n%s_kernel:\n' % (NAME, NAME, NAME)
    out += "\n".join(g.L) + "\n"
    out += """.section .rodata,"a"
.p2align 6
.amdhsa_kernel %s_kernel
  .amdhsa_next_free_vgpr 256
  .amdhsa_next_free_sgpr 102
  .amdhsa_accum_offset 256
  .amdhsa_group_segment_fixed_size 0
  .amdhsa_kernarg_size 104
  .amdhsa_user_sgpr_count 2
  .amdhsa_user_sgpr_kernarg_segment_ptr 1
  .amdhsa_system_sgpr_workgroup_id_x 1
  .amdhsa_float_denorm_mode_32 3
.end_amdhsa_kernel
""" % NAME
    return out


if __name__ == "__main__":
    for spec in sys.argv[1:]:
        kw = {}
        fn = None
        for kv in spec.split(","):
            k, v = kv.split("=")
            if k == "o":
                fn = v
                continue
            kw[k] = int(v) if v.lstrip('-').isdigit() else v.replace("+", " ").replace("none", "")
        if fn is None:
            fn = "k5_" + spec.replace(",", "_").replace("=", "").replace("+", "") + ".s"
        open(fn, "w").write(gen(**kw))
        print(fn)
```

```python
import gen5, re, sys
N = gen5.NAME
def mk(fn, order, grid, block, lds, vg):
    s = gen5.gen(cal=16, stat="min")
    m = re.search(r"; @launch (.*)\n", s)
    main = "; @launch kernel=%s_kernel %s\n" % (N, m.group(1))
    tiny = "; @launch kernel=tiny_kernel grid=(%d,1,1) block=(%d,1,1) lds=%d\n" % (grid, block, lds)
    s = s.replace(m.group(0), {"mt": main + tiny, "tm": tiny + main, "m": main}[order])
    if order != "m":
        s = s.replace('.section .rodata,"a"', '.p2align 8\n.globl tiny_kernel\n.type tiny_kernel,@function\ntiny_kernel:\n    s_endpgm\n.section .rodata,"a"')
        s += """.p2align 6
.amdhsa_kernel tiny_kernel
  .amdhsa_next_free_vgpr %d
  .amdhsa_next_free_sgpr 16
  .amdhsa_accum_offset %d
  .amdhsa_group_segment_fixed_size 0
  .amdhsa_kernarg_size 104
  .amdhsa_user_sgpr_count 2
  .amdhsa_user_sgpr_kernarg_segment_ptr 1
  .amdhsa_system_sgpr_workgroup_id_x 1
.end_amdhsa_kernel
""" % (vg, vg)
    open(fn, "w").write(s)
mk("a1.s", "m", 0, 0, 0, 0)
mk("a2.s", "mt", 1, 64, 0, 8)
mk("a3.s", "mt", 256, 384, 156672, 256)
mk("a4.s", "mt", 256, 64, 0, 8)
mk("a5.s", "tm", 1, 64, 0, 8)
mk("a6.s", "tm", 256, 384, 156672, 256)
```

```python
import sys
NAME = "gated_mix__mha_block_cached__glu_gated_swiglu__decode"

HEADER = """; Kernarg layout for this problem (104 bytes, ptrs only, base s[0:1]):
"""

HB = 0x00000
QB = 0x10000
HL = 0x30000
ML = 0x40000
REF = 0x50000
ACC = 0x170000
ASTR = 4480
RSTR = 4352
TUNE = 0x800000
STAMP = 0x20000000

NS = 9
SLOT = 16384
CTL = NS * SLOT
O_LANDED, O_WIN = 0, 8
O_FREE = 16
O_OK, O_PREADY, O_FOK, O_F = 32, 36, 40, 44
O_PDONE = 48
O_KDONE = 64
O_QDONE = 80
O_OST = 96
O_G = 104
O_Q = 256
O_H = 512
O_B = 640
O_SC = 1024
O_QP = O_SC + 6144
PSTR = 512
LDS_BYTES = CTL + O_SC + 8192

LOG2E = 0x3fb8aa3b
SCALE = 0x3db504f3
SPIN = 1000000


class G:
    def __init__(self):
        self.L = []
        self.n = 0

    def __call__(self, s):
        for line in s.strip().split("\n"):
            line = line.strip()
            if line:
                self.L.append(line if line.endswith(":") else "    " + line)

    def lab(self, p):
        self.n += 1
        return "L_%s_%d" % (p, self.n)


def gen(FT=17, base8=168, c0=13, per=8, dly=4, ka=62, late=150,
        lay="T1", hm="288.079.4df.7cb.718", sm="3.2.0", diag=0, pol="nt", wpol="nt", qpol="", fpol="", CSL=0, cal=-1,
        H1S=0, ASL=2, dbg=0, FS=0, FD=8, QF=6, F0=176, bK=174, FW=4, KEND=64, FR=1, FW0=16, tune=0, PF=0, MLP=78,
        VT=0, UN=0, TW=0, stat="", mul=10, sub=0, NR=1, NH=1, FP=512, W2P=510, FB=0, NB=2, QS=4, FLP=21, QG=39, RM=5, EG=0, EB=0, WR=1, CEND=120, FLO=17, FHI=27, gm="1a75.1a91.120f.0b58.16df.0025.0044.0050.1587.080c.11c2.1250.1cab.0f1e.0064.0842.08e4.0001", FL=1, PT=0, AF=1, KD=0, OT=0, OS="", LOC=0, PW=0, DT=0):
    g = G()
    NBITS, SB = {"T1": ((17, 18, 19, 20, 21, 22), (14, 15, 16)),
              "T2": ((14, 18, 19, 20, 21, 22), (15, 16, 17)),
              "TQ": ((16, 17, 18, 19, 21, 22), (14, 15, 20)),
              "TR": ((15, 16, 17, 18, 19, 22), (14, 20, 21)),
              "TS": ((14, 17, 18, 19, 21, 22), (15, 16, 20)),
              "TC": ((14, 15, 16, 17, 18, 19), (20, 21, 22))}[lay]
    HM = [(int(x, 16) << 12) | (1 << (23 + i)) for i, x in enumerate(hm.split("."))]
    SM = [(int(x, 16) << 12) | (1 << SB[i]) for i, x in enumerate(sm.split("."))]
    FMIN, FMAX = FLO, FHI
    CP = list(range(c0, (CEND if EG else 126) - dly, per))
    assert len(CP) <= 32 and dly < per
    dg = diag or cal >= 0
    assert FLP < QG <= 53
    RD = 8 // QS
    NU = 16 * RD
    lr = RD.bit_length() - 1

    def stamp(k, wave=None):
        if not diag and k != cal:
            return
        if diag == 2 and k not in (0, 3, 7):
            return
        if diag == 3 and k not in (0, 3, 7, 10, 12, 14):
            return
        if diag == 4 and k not in (0, 3, 4, 5, 6, 7, 10, 11):
            return
        lab = g.lab("ns")
        if wave is not None:
            g("s_cmp_eq_u32 s3, %d" % wave)
            g("s_cbranch_scc0 %s" % lab)
        g("s_memrealtime s[%d:%d]" % (66 + 2 * k, 67 + 2 * k))
        g("s_waitcnt lgkmcnt(0)")
        g(lab + ":")

    def spin_guard(lab_loop):
        g("""
        s_add_u32 s60, s60, 1
        s_cmp_lt_u32 s60, %d
        s_cbranch_scc1 %s
        s_branch L_end
        """ % (SPIN, lab_loop))

    def lds_wait_flag(off, vt, sleep=1):
        a = g.lab("w"); b = g.lab("d")
        g("s_mov_b32 s60, 0")
        g(a + ":")
        g("""
        ds_read_b32 %s, v1 offset:%d
        s_waitcnt lgkmcnt(0)
        v_readfirstlane_b32 s61, %s
        s_cmp_lg_u32 s61, 0
        s_cbranch_scc1 %s
        """ % (vt, off, vt, b))
        if sleep:
            g("s_sleep %d" % sleep)
        spin_guard(a)
        g(b + ":")

    def lds_wait_ge(off, sreg, vt, sleep=1):
        a = g.lab("w"); b = g.lab("d")
        g("s_mov_b32 s60, 0")
        g(a + ":")
        g("""
        ds_read_b32 %s, v1 offset:%d
        s_waitcnt lgkmcnt(0)
        v_readfirstlane_b32 s61, %s
        s_cmp_ge_i32 s61, %s
        s_cbranch_scc1 %s
        """ % (vt, off, vt, sreg, b))
        if sleep:
            g("s_sleep %d" % sleep)
        spin_guard(a)
        g(b + ":")

    def lds_wait_sum3(off, want, vt, sleep=0):
        a = g.lab("w"); b = g.lab("d")
        g("s_mov_b32 s60, 0")
        g(a + ":")
        g("""
        ds_read_b96 v[%d:%d], v1 offset:%d
        s_waitcnt lgkmcnt(0)
        v_add3_u32 v%d, v%d, v%d, v%d
        s_nop 0
        v_readfirstlane_b32 s61, v%d
        s_cmp_eq_u32 s61, %d
        s_cbranch_scc1 %s
        """ % (vt, vt + 2, off, vt, vt, vt + 1, vt + 2, vt, want, b))
        if sleep:
            g("s_sleep %d" % sleep)
        spin_guard(a)
        g(b + ":")

    def wait_landed(vt):
        a = g.lab("wl"); b = g.lab("wd")
        g("""
        s_cmp_gt_i32 s59, s15
        s_cbranch_scc1 %s
        s_mov_b32 s60, 0
        """ % b)
        g(a + ":")
        g("""
        ds_read_b32 %s, v1 offset:%d
        s_waitcnt lgkmcnt(0)
        v_readfirstlane_b32 s59, %s
        s_cmp_gt_i32 s59, s15
        s_cbranch_scc1 %s
        """ % (vt, O_LANDED, vt, b))
        if CSL:
            g("s_sleep %d" % CSL)
        spin_guard(a)
        g(b + ":")

    def check_valid(regs, vt, lab_ok):
        regs = list(regs)
        cur = regs.pop(0)
        while regs:
            if len(regs) >= 2:
                g("v_max3_u32 %s, %s, %s, %s" % (vt, cur, regs[0], regs[1]))
                regs = regs[2:]
            else:
                g("v_max_u32 %s, %s, %s" % (vt, cur, regs[0]))
                regs = []
            cur = vt
        g("v_cmp_eq_u32 vcc, -1, %s" % cur)
        g("s_cbranch_vccz %s" % lab_ok)

    def xsum(regs, tmp, inst, op="v_add_f32"):
        for r, t in zip(regs, tmp):
            g("v_mov_b32 %s, %s" % (t, r))
        g("s_nop 1")
        for r, t in zip(regs, tmp):
            g("%s %s, %s" % (inst, r, t))
        g("s_nop 1")
        for r, t in zip(regs, tmp):
            g("%s %s, %s, %s" % (op, r, r, t))

    def rowred(v, op, shifts):
        for sh in shifts:
            g("s_nop 1")
            g("%s_dpp %s, %s, %s row_ror:%d row_mask:0xf bank_mask:0xf" % (op, v, v, v, sh))

    SEL = 240

    def selectors():
        g("""
        v_and_b32 v8, 1, v0
        v_cmp_eq_u32 vcc, 1, v8
        v_mov_b32 v9, 0x0c0c0100
        v_mov_b32 v10, 0x01000c0c
        v_mov_b32 v11, 0x0c0c0302
        v_mov_b32 v12, 0x03020c0c
        v_mov_b32 v13, 0x0c0c0c0c
        v_bfe_u32 v8, v0, 1, 2
        v_cndmask_b32 v9, v9, v10, vcc
        v_cndmask_b32 v11, v11, v12, vcc
        """)
        for m in range(4):
            g("v_cmp_eq_u32 vcc, %d, v8" % m)
            g("s_nop 1")
            g("v_cndmask_b32 v%d, v13, v9, vcc" % (SEL + m))
            g("v_cndmask_b32 v%d, v13, v11, vcc" % (SEL + 4 + m))

    def diag_ops(src, n, dst):
        for u in range(n):
            for m in range(4):
                g("v_perm_b32 v%d, v%d, v%d, v%d" % (dst + 4 * u + m, src + (u >> 1), src + (u >> 1), SEL + 4 * (u & 1) + m))

    def gather_cols(wsoff, nld, vaddr, d, tmp, sleep):
        a = g.lab("g"); b = g.lab("gd")
        g("""
        s_lshl_b32 s61, s5, 2
        s_add_u32 s61, s61, s42
        s_lshl_b32 s61, s61, 11
        s_add_u32 s61, s61, %d
        v_lshl_add_u32 %s, v0, 2, s61
        s_mov_b32 s60, 0
        """ % (wsoff, vaddr))
        g(a + ":")
        for j in range(nld):
            g("global_load_dword v%d, %s, s[40:41] offset:%d sc1" % (d + j, vaddr, 256 * j))
        g("s_waitcnt vmcnt(0)")
        check_valid(["v%d" % (d + i) for i in range(nld)], "v%d" % tmp, b)
        if sleep:
            g("s_sleep %d" % sleep)
        spin_guard(a)
        g(b + ":")
        regs = [d + i for i in range(nld)]
        while len(regs) > 1:
            nxt = []
            for i in range(0, len(regs) - 1, 2):
                g("v_add_f32 v%d, v%d, v%d" % (regs[i], regs[i], regs[i + 1]))
                nxt.append(regs[i])
            if len(regs) & 1:
                nxt.append(regs[-1])
            regs = nxt
        xsum(["v%d" % d], ["v%d" % tmp], "v_permlane16_swap_b32")
        xsum(["v%d" % d], ["v%d" % tmp], "v_permlane32_swap_b32")

    def rbf(v):
        g("v_cvt_pk_bf16_f32 %s, %s, %s" % (v, v, v))
        g("v_and_b32 %s, 0xffff0000, %s" % (v, v))

    if cal >= 0 or diag in (2, 3):
        g("s_memrealtime s[98:99]")
    def ids():
        g("""
        s_and_b32 s42, s2, 31
        s_and_b32 s4, s2, 7
        s_lshl_b32 s4, s4, 2
        s_lshr_b32 s5, s42, 3
        s_or_b32 s4, s4, s5
        s_lshr_b32 s5, s2, 5
        """)
    if diag:
        for k in ((33, 36, 40, 41, 48) if diag == 2 else range(33, 49)):
            g("s_mov_b64 s[%d:%d], 0" % (2 * k, 2 * k + 1))
    elif cal >= 0 and cal < 16:
        g("s_mov_b64 s[%d:%d], 0" % (66 + 2 * cal, 67 + 2 * cal))
    g("""
    v_readfirstlane_b32 s3, v0
    s_cmp_ge_u32 s2, 256
    s_cbranch_scc1 L_exit
    v_mov_b32 v1, %d
    s_lshr_b32 s3, s3, 6
    s_cbranch_scc1 L_notloader
    s_load_dwordx8 s[16:23], s[0:1], 8
    """ % CTL)
    if dg or tune:
        g("s_load_dwordx2 s[40:41], s[0:1], 96")

    g("""
    s_setprio 3
    v_lshrrev_b32 v8, 4, v0
    v_lshlrev_b32 v9, 2, v8
    v_and_b32 v10, 15, v0
    v_xor_b32 v9, v9, v10
    v_lshlrev_b32 v8, 8, v8
    v_lshl_add_u32 v2, v9, 4, v8
    v_xor_b32 v3, 16, v2
    v_xor_b32 v4, 32, v2
    v_xor_b32 v5, 48, v2
    v_mov_b32 v7, 0
    v_mov_b32 v12, 0
    s_mov_b32 s7, 0
    """)
    GEN = tune >= 3 or bool(gm)
    GEN2 = tune == 4 or len(gm.split(".")) == 18
    if gm:
        GM = [int(x, 16) << (10 if GEN2 else 12) for x in gm.split(".")]
        for i, hb in enumerate((2, 3, 4, 0, 1)):
            GM[i] |= 1 << (23 + hb)
    if tune >= 3:
        g("""
        s_waitcnt lgkmcnt(0)
        s_add_u32 s44, s40, %d
        s_addc_u32 s45, s41, 0
        s_load_dwordx16 s[48:63], s[44:45], 0
        s_load_dwordx2 s[26:27], s[44:45], 64
        s_waitcnt lgkmcnt(0)
        s_mov_b32 s64, s62
        s_mov_b32 s65, s63
        """ % (TUNE + 128))
    elif gm:
        g("s_mov_b32 s64, 0x%x" % GM[14])
        g("s_mov_b32 s65, 0x%x" % GM[15])
    if tune == 2:
        g("""
        s_waitcnt lgkmcnt(0)
        s_add_u32 s44, s40, %d
        s_addc_u32 s45, s41, 0
        s_load_dwordx8 s[48:55], s[44:45], 0
        s_waitcnt lgkmcnt(0)
        """ % (TUNE + 128))
    for i in range(8):
        g("s_bitcmp1_b32 s2, %d" % i)
        if tune >= 2:
            g("s_cselect_b32 s8, s%d, 0" % (48 + i))
        elif gm:
            g("s_cselect_b32 s8, 0x%x, 0" % GM[i])
        else:
            g("s_cselect_b32 s8, 0x%x, 0" % (HM[2:] + HM[:2] + SM)[i])
        g("s_xor_b32 s7, s7, s8")

    def table():
        g("v_mov_b32 v14, s7")
        for b in range(6):
            g("v_bfe_i32 v8, v0, %d, 1" % b)
            g("v_and_b32 v8, %s, v8" % ("s%d" % (56 + b) if tune >= 3 else "0x%x" % GM[8 + b]))
            g("v_xor_b32 v14, v14, v8")
    DTT = GEN and DT and not tune
    if GEN and not DTT:
        table()
    g("""
    s_mov_b32 s9, 1
    s_mov_b32 s10, 0
    s_mov_b32 s11, %d
    s_mov_b32 s12, 0
    s_mov_b32 s13, s7
    s_mov_b32 s46, 0x10000000
    s_mov_b32 s47, 0x20000
    s_barrier
    s_waitcnt lgkmcnt(0)
    s_mov_b32 s44, s16
    s_mov_b32 s45, s17
    """ % (0 if DTT else NS))
    stamp(0)
    if KD:
        g("s_sleep %d" % KD)
    g("s_branch L_ld_f%d" % (F0 // 8))

    g("L_notloader:")
    if PF:
        g("v_subrev_u32 v2, 128, v0")
    g("""
    v_and_b32 v0, 63, v0
    s_cmp_eq_u32 s3, 1
    s_cbranch_scc0 L_noinit
    v_lshl_add_u32 v3, v0, 2, v1
    v_mov_b32 v4, 0
    ds_write_b32 v3, v4
    s_waitcnt lgkmcnt(0)
    L_noinit:
    s_load_dwordx16 s[16:31], s[0:1], 0
    s_load_dwordx8 s[32:39], s[0:1], 64
    s_load_dwordx2 s[40:41], s[0:1], 96
    """)
    if PF:
        g("""
        s_bfe_u32 s4, s2, 0x20003
        v_lshl_add_u32 v2, v2, 2, s4
        s_getpc_b64 s[4:5]
        L_pc:
        s_sub_u32 s4, s4, L_pc - %s_kernel
        s_subb_u32 s5, s5, 0
        v_lshlrev_b32 v3, 7, v2
        v_cmp_gt_u32 vcc, (L_exit - %s_kernel) / 128, v2
        s_and_saveexec_b64 s[6:7], vcc
        s_cbranch_execz L_nopf
        global_load_dword v255, v3, s[4:5]
        L_nopf:
        s_mov_b64 exec, s[6:7]
        """ % (NAME, NAME))
    ids()
    g("""
    s_barrier
    s_cmp_lt_u32 s3, 4
    s_cbranch_scc1 L_cons
    """)
    g("""
    s_cmp_eq_u32 s3, 4
    s_cbranch_scc1 L_aux
    """)
    g("s_branch L_q")

    def publish(c):
        g("v_add_u32 v8, %d, v7" % c)
        g("ds_write_b32 v1, v8 offset:%d" % O_LANDED)

    def ring_slow(lab, back):
        g(lab + ":")
        g("s_mov_b32 s60, 0")
        a = g.lab("rw")
        g(a + ":")
        g("""
        ds_read_b96 v[8:10], v1 offset:%d
        s_waitcnt lgkmcnt(0)
        v_add_u32 v9, 1, v9
        v_add_u32 v10, 2, v10
        v_min3_u32 v8, v8, v9, v10
        s_nop 0
        v_readfirstlane_b32 s11, v8
        s_add_u32 s11, s11, %d
        s_cmp_lt_u32 s9, s11
        s_cbranch_scc1 %s
        """ % (O_FREE, NS, back))
        if diag:
            g("s_add_u32 s96, s96, 1")
        spin_guard(a)

    g("L_ld_slot:")
    if dg and diag not in (2, 4):
        for k, n in ((12, 8), (13, 40), (14, 64), (9, 112), (10, 2)):
            if (not diag and k != cal) or (diag == 1 and k == 10):
                continue
            lab = g.lab("ns")
            g("s_cmp_eq_u32 s9, %d" % n)
            g("s_cbranch_scc0 %s" % lab)
            stamp(k)
            g(lab + ":")
    g("""
    s_cmp_lt_u32 s9, s11
    s_cbranch_scc0 L_ld_full
    L_ld_go:
    s_waitcnt lgkmcnt(%d)
    v_readfirstlane_b32 s15, v12
    """ % (1 if WR else 2 if UN else 4))
    if not WR:
        g("ds_read_b32 v12, v1 offset:%d" % O_WIN)
    if GEN:
        g("s_and_b32 s12, s9, 63")
        g("v_readlane_b32 s13, v14, s12")
    else:
        g("s_mov_b32 s13, s7")
    b = 6 if GEN else 0
    while b < 6:
        e = b
        while e + 1 < 6 and NBITS[e + 1] == NBITS[e] + 1:
            e += 1
        g("s_bfe_u32 s12, s9, 0x%x" % (b | ((e - b + 1) << 16)))
        g("s_lshl_b32 s12, s12, %d" % NBITS[b])
        g("s_xor_b32 s13, s13, s12")
        b = e + 1
    g("""
    s_brev_b32 s12, s9
    s_lshr_b32 s12, s12, 29
    s_add_u32 s15, s15, s12
    s_add_u32 s9, s9, 1
    s_mov_b32 s12, 0
    """)
    if diag:
        g("s_add_u32 s61, s15, %d" % F0)
        g("s_lshr_b32 s61, s61, 3")
        g("s_add_u32 s97, s97, s61")

    def body(F):
        lab = "L_ld_f%d" % F
        g(lab + ":")
        if UN:
            for T in range(4):
                g("s_add_u32 m0, s10, %d" % (T * 4096))
                g("s_xor_b32 s14, s13, %d" % (T * 4096))
                for u in range(4):
                    g("s_waitcnt vmcnt(%d)" % (F - 1))
                    if (4 * T + u) % 8 == (F - 1) % 8:
                        publish((4 * T + u - F + 1) // 4)
                    g("buffer_load_dwordx4 v%d, s[44:47], s14 offen offset:%d %s lds" % (2 + u, u * 1024, pol))
            g("v_add_u32 v7, 4, v7")
            return
        g("s_add_u32 m0, s10, s12")
        if GEN:
            g("""
            s_mov_b32 s14, s13
            s_bitcmp1_b32 s12, 12
            s_cselect_b32 s8, s65, s64
            s_xor_b32 s13, s13, s8
            """)
        else:
            g("s_xor_b32 s14, s13, s12")
        if WR:
            g("ds_read_b32 v12, v1 offset:%d" % O_WIN)
        for u in range(4):
            g("s_waitcnt vmcnt(%d)" % (F - 1))
            if u == (F - 1) % 4:
                publish((u - F + 1) // 4)
            if GEN2:
                g("buffer_load_dwordx4 v%d, s[44:47], s14 offen %s lds" % (2 + u, pol))
                if u < 3:
                    g("s_addk_i32 m0, 0x400")
                    g("s_xor_b32 s14, s14, %s" % (("s26", "s27")[u & 1] if tune == 4 else "0x%x" % GM[16 + (u & 1)]))
                continue
            g("buffer_load_dwordx4 v%d, s[44:47], s14 offen offset:%d %s lds" % (2 + u, u * 1024, pol))
        g("""
        v_add_u32 v7, 1, v7
        s_addk_i32 s12, 0x1000
        s_cmpk_lt_u32 s12, 0x4000
        s_cbranch_scc1 %s
        """ % lab)
    f0 = F0 // 8
    if FB:
        g("s_cmp_gt_u32 s9, %d" % (128 - NB))
        g("s_cbranch_scc1 L_ld_f%d" % FB)
    g("s_cmp_lt_i32 s15, %d" % (8 * f0 - F0))
    g("s_cbranch_scc1 L_ld_lo")
    if f0 < FMAX:
        g("s_cmp_ge_i32 s15, %d" % (8 * (f0 + 1) - F0))
        g("s_cbranch_scc1 L_ld_hi")
    body(f0)
    g("""
    L_ld_adv:
    s_add_u32 s10, s10, %d
    s_cmp_eq_u32 s10, %d
    s_cselect_b32 s10, 0, s10
    s_and_b32 s12, s9, 63
    s_cbranch_scc1 L_ld_slot
    s_branch L_ld_turn
    """ % (SLOT, NS * SLOT))
    g("L_ld_lo:")
    for F in range(f0 - 1, FMIN - 1, -1):
        if F > FMIN:
            g("s_cmp_lt_i32 s15, %d" % (8 * F - F0))
            g("s_cbranch_scc1 L_ld_t%d" % (F - 1))
        body(F)
        g("s_branch L_ld_adv")
        if F > FMIN:
            g("L_ld_t%d:" % (F - 1))
    g("L_ld_hi:")
    for F in range(f0 + 1, FMAX + 1):
        if F < FMAX:
            g("s_cmp_ge_i32 s15, %d" % (8 * (F + 1) - F0))
            g("s_cbranch_scc1 L_ld_t%d" % (F + 1))
        body(F)
        g("s_branch L_ld_adv")
        if F < FMAX:
            g("L_ld_t%d:" % (F + 1))
    if FB:
        body(FB)
        g("s_branch L_ld_adv")
    if DTT:
        g("""
        L_ld_full:
        s_cmp_eq_u32 s11, 0
        s_cbranch_scc0 L_ld_full1
        """)
        table()
        g("s_mov_b32 s11, %d" % NS)
        g("s_branch L_ld_go")
    ring_slow("L_ld_full1" if DTT else "L_ld_full", "L_ld_go")
    ring_slow("L_ld_full2", "L_ld_go2")
    g("""
    L_ld_turn:
    s_mov_b32 s44, s18
    s_mov_b32 s45, s19
    v_lshlrev_b32 v2, 4, v0
    v_mov_b32 v3, v2
    v_mov_b32 v4, v2
    v_mov_b32 v5, v2
    s_cmp_eq_u32 s9, 64
    s_cbranch_scc1 L_ld_slot
    """)
    ids()
    g("""
    v_lshrrev_b32 v8, 3, v0
    v_and_b32 v9, 7, v0
    v_lshlrev_b32 v8, 10, v8
    v_lshl_add_u32 v2, v9, 4, v8
    s_lshl_b32 s13, s4, 17
    s_lshl_b32 s14, s5, 7
    s_add_u32 s13, s13, s14
    s_mov_b32 s44, s22
    s_mov_b32 s45, s23
    s_mov_b32 s46, 0x400000
    """)
    stamp(2)
    g("""
    s_cmp_lt_u32 s9, s11
    s_cbranch_scc0 L_ld_full2
    L_ld_go2:
    """)
    assert 17 <= FT <= 60
    for u in range(16):
        g("s_add_u32 m0, s10, %d" % (u * 1024))
        g("s_waitcnt vmcnt(%d)" % (FT - 1))
        if u % 4 == (FT - 1) % 4:
            publish((u - FT + 1) // 4)
        g("buffer_load_dwordx4 v2, s[44:47], s13 offen %s lds" % wpol)
        g("s_addk_i32 s13, 0x2000")
    for o in list(range(56, 15, -4)) + [8, 0]:
        if o >= FT:
            continue
        g("s_waitcnt vmcnt(%d)" % o)
        publish(4 - o // 4)
        if o == 16:
            stamp(3)
        if o == 0:
            stamp(11)
    if diag in (2, 3):
        g("s_mov_b64 s[82:83], s[98:99]")
    g("s_branch L_end")

    g("L_q:")
    g("""
    s_lshr_b32 s6, s5, %d
    s_and_b32 s7, s5, %d
    v_lshrrev_b32 v10, 4, v0
    s_lshl_b32 s61, s6, %d
    s_lshl_b32 s62, s7, 5
    s_or_b32 s61, s61, s62
    v_lshl_add_u32 v2, v10, %d, s61
    v_and_b32 v11, 15, v0
    v_lshlrev_b32 v10, %d, v10
    v_lshl_add_u32 v3, v11, 4, v10
    s_lshl_b32 s61, s6, %d
    s_lshl_b32 s62, s4, 8
    s_add_u32 s61, s61, s62
    s_lshl_b32 s62, s7, 17
    s_or_b32 s61, s61, s62
    s_mov_b32 s54, 0x400000
    s_mov_b32 s55, 0x20000
    s_waitcnt lgkmcnt(0)
    s_mov_b32 s52, s22
    s_mov_b32 s53, s23
    """ % (lr, RD - 1, 7 + lr, 5 + lr, 17 + lr, 19 + lr))

    def qload(u):
        g("s_xor_b32 s62, s61, %d" % (u << 13))
        if not dbg & 16:
            g("buffer_load_dwordx4 v[%d:%d], v3, s[52:55], s62 offen %s" % (96 + 4 * (u & 31), 99 + 4 * (u & 31), qpol))
    for u in range(16):
        qload(u)
    for j in range(NU // 8):
        g("v_xor_b32 v4, %d, v2" % (16 * j))
        g("global_load_dwordx4 v[%d:%d], v4, s[16:17]" % (16 + 4 * j, 19 + 4 * j))
    selectors()
    g("s_waitcnt vmcnt(0)")
    issued = 16
    for u in range(NU):
        a0 = 48 + 4 * (u & 7)
        for m in range(4):
            g("v_perm_b32 v%d, v%d, v%d, v%d" % (a0 + m, 16 + (u >> 1), 16 + (u >> 1), SEL + 4 * (u & 1) + m))
        g("s_waitcnt vmcnt(%d)" % (issued - 1 - max(u, 15)))
        n0 = issued
        while issued < NU and issued - max(u, 15) - 1 < QF and issued - u < 30:
            qload(issued)
            issued += 1
        if n0 == issued:
            g("s_nop 0")
        g("v_mfma_f32_16x16x32_bf16 v[12:15], v[%d:%d], v[%d:%d], %s" % (
            a0, a0 + 3, 96 + 4 * (u & 31), 99 + 4 * (u & 31), "0" if u == 0 else "v[12:15]"))
    stamp(8)
    g("s_branch L_ctl")

    g("L_cons:")
    g("""
    s_lshr_b32 s58, s2, 3
    s_sub_u32 s61, s3, 1
    s_or_b32 s58, s58, s61
    s_waitcnt lgkmcnt(0)
    s_cmp_eq_u32 s58, 0
    s_cbranch_scc0 L_c_nc
    v_mov_b32 v12, -1
    v_mov_b32 v13, -1
    v_mov_b32 v14, -1
    v_mov_b32 v15, -1
    s_lshl_b32 s61, s2, 10
    v_lshl_add_u32 v8, v0, 4, s61
    """)
    if PT:
        g("""
        v_lshlrev_b32 v9, 2, v0
        v_lshlrev_b32 v10, 4, v0
        global_load_dword v254, v9, s[38:39] sc1
        global_load_dword v254, v10, s[34:35]
        """)
    for k in range(8 + 2 * QS):
        if not dbg & 8:
            g("global_store_dwordx4 v8, v[12:15], s[40:41] sc1")
        g("v_add_u32 v8, 0x2000, v8")
    g("""
    s_lshl_b32 s61, s2, 13
    s_add_u32 s61, s61, %d
    v_lshl_add_u32 v8, v0, 8, s61
    s_mov_b32 exec_hi, 0
    global_store_dwordx4 v8, v[12:15], s[40:41] sc1
    s_mov_b32 exec_hi, -1
    v_lshrrev_b32 v10, 3, v0
    v_lshl_add_u32 v10, v10, 3, s2
    v_and_b32 v9, 7, v0
    v_lshlrev_b32 v9, 4, v9
    v_mul_u32_u24 v8, %d, v10
    v_add_u32 v8, v8, v9
    v_add_u32 v8, %d, v8
    """ % (ML, RSTR, REF))
    for k0 in range(0, len(CP), 8):
        nl = min(8, len(CP) - k0)
        if nl < 8:
            g("s_mov_b32 exec_lo, 0x%x\ns_mov_b32 exec_hi, 0x%x" % (((1 << (8 * nl)) - 1) & 0xffffffff, ((1 << (8 * nl)) - 1) >> 32))
        g("global_store_dwordx4 v8, v[12:15], s[40:41] sc1")
        g("v_add_u32 v8, %d, v8" % (64 * RSTR))
    g("""
    s_mov_b64 exec, -1
    v_mul_u32_u24 v8, %d, v10
    v_add_u32 v8, v8, v9
    v_add_u32 v8, %d, v8
    v_mov_b32 v16, 0
    v_mov_b32 v17, 0
    v_mov_b32 v18, 0
    v_mov_b32 v19, 0
    global_store_dwordx4 v8, v[16:19], s[40:41] sc1
    v_add_u32 v8, %d, v8
    global_store_dwordx4 v8, v[16:19], s[40:41] sc1
    s_lshl_b32 s61, s2, 2
    v_mov_b32 v9, s61
    v_mov_b32 v10, 1
    s_mov_b64 exec, 1
    s_waitcnt vmcnt(0)
    global_store_dword v9, v10, s[38:39] sc1
    s_mov_b64 exec, -1
    L_c_nc:
    """ % (ASTR, ACC, 64 * ASTR))
    if TW:
        g("""
        s_cmp_eq_u32 s3, 3
        s_cbranch_scc0 L_c_ntw
        s_lshl_b32 s61, s4, 23
        v_lshl_add_u32 v8, v0, 21, s61
        s_lshl_b32 s61, s4, 17
        v_mov_b32 v9, s61
        v_mov_b32 v10, 0
        """)
        if TW > 1:
            lds_wait_ge(O_LANDED, "%d" % TW, "v11", sleep=2)
        g("""
        s_mov_b64 exec, 15
        global_load_dword v254, v8, s[20:21] nt
        global_load_dword v254, v8, s[18:19] nt
        s_mov_b64 exec, 1
        global_load_dword v254, v9, s[24:25] nt
        global_load_dword v254, v10, s[36:37] nt
        global_load_dword v254, v10, s[28:29]
        global_load_dword v254, v10, s[30:31]
        global_load_dword v254, v10, s[32:33]
        s_mov_b64 exec, -1
        L_c_ntw:
        """)
    selectors()
    g("""
    v_and_b32 v13, 15, v0
    v_lshrrev_b32 v14, 4, v0
    v_and_b32 v15, 3, v13
    v_lshrrev_b32 v5, 2, v13
    v_lshl_add_u32 v15, v15, 2, v5
    v_xor_b32 v8, v13, v14
    v_lshlrev_b32 v8, 4, v8
    v_lshl_add_u32 v8, v15, 8, v8
    v_xor_b32 v9, 64, v8
    v_xor_b32 v10, 0x80, v8
    v_xor_b32 v11, 0xc0, v8
    v_lshlrev_b32 v12, 4, v0
    v_and_b32 v2, 1, v5
    v_lshl_add_u32 v2, v2, 2, v14
    v_lshlrev_b32 v2, 4, v2
    v_lshrrev_b32 v3, 1, v5
    v_lshl_add_u32 v2, v3, 3, v2
    v_add_u32 v2, v2, v1
    v_lshl_add_u32 v3, v3, 2, v14
    v_lshl_add_u32 v3, v3, 4, v1
    s_sub_u32 s9, s3, 1
    s_mul_i32 s10, s9, %d
    s_lshl_b32 s11, s9, 2
    v_add_u32 v4, s11, v1
    s_mov_b32 s13, %d
    s_mov_b32 s59, 0
    """ % (SLOT, SCALE))
    for r in list(range(80, 88)) + [248, 6]:
        g("v_mov_b32 v%d, 0" % r)

    def ring_adv():
        g("""
        s_add_u32 s10, s10, %d
        s_cmp_ge_u32 s10, %d
        s_cselect_b32 s61, %d, 0
        s_sub_u32 s10, s10, s61
        """ % (3 * SLOT, NS * SLOT, NS * SLOT))

    def k_head():
        g("""
        s_lshl_b32 s15, s9, 2
        s_add_u32 s15, s15, 3
        v_add_u32 v224, s10, v8
        v_add_u32 v225, s10, v9
        v_add_u32 v226, s10, v10
        v_add_u32 v227, s10, v11
        s_lshl_b32 s61, s9, 7
        v_add_u32 v228, s61, v2
        s_add_u32 s9, s9, 3
        v_add_u32 v248, 3, v248
        """)
        wait_landed("v230")

    def kread(k, base=96):
        g("ds_read_b128 v[%d:%d], v%d offset:%d" % (base + 4 * k, base + 3 + 4 * k, 224 + (k & 3), 4096 * (k >> 2)))

    def k_round():
        g("""
        v_cvt_pk_bf16_f32 v230, v88, v89
        v_cvt_pk_bf16_f32 v231, v90, v91
        v_lshlrev_b32 v88, 16, v230
        v_and_b32 v89, 0xffff0000, v230
        v_lshlrev_b32 v90, 16, v231
        v_and_b32 v91, 0xffff0000, v231
        v_mul_f32 v88, s13, v88
        v_mul_f32 v89, s13, v89
        v_mul_f32 v90, s13, v90
        v_mul_f32 v91, s13, v91
        v_cvt_pk_bf16_f32 v230, v88, v89
        v_cvt_pk_bf16_f32 v231, v90, v91
        """)

    for st in range(2):
        k_head()
        for k in range(16):
            if k >= 8:
                g("s_waitcnt lgkmcnt(7)")
            kread(k, 96 + 64 * st)
        g("s_waitcnt lgkmcnt(0)")
        g("ds_write_b32 v4, v248 offset:%d" % O_FREE)
        ring_adv()
    g("v_lshl_add_u32 v7, v14, 4, v1")
    lds_wait_flag(O_QDONE, "v16", sleep=0)
    for j in range(4):
        g("ds_read_b128 v[%d:%d], v7 offset:%d" % (224 + 4 * j, 227 + 4 * j, O_Q + 64 * j))
    g("s_waitcnt lgkmcnt(0)")
    for T in range(4):
        g("v_cmp_eq_u32 vcc, %d, v5" % T)
        g("s_nop 1")
        for r in range(16):
            g("v_cndmask_b32 v%d, 0, v%d, vcc" % (16 + 16 * T + r, 224 + r))
    stamp(1, 1)
    g("""
    s_sub_u32 s61, s9, 6
    s_lshl_b32 s61, s61, 7
    v_add_u32 v15, s61, v2
    """)

    def stash_mul(st):
        for k in range(16):
            g("v_mfma_f32_16x16x32_bf16 v[88:91], v[%d:%d], v[%d:%d], %s" % (
                96 + 64 * st + 4 * k, 99 + 64 * st + 4 * k, 16 + 4 * k, 19 + 4 * k, "0" if k == 0 else "v[88:91]"))
        g("s_nop 7")
        k_round()
        g("ds_write_b64 v15, v[230:231] offset:%d" % (O_SC + 384 * st))
    stash_mul(0)

    g("L_k_loop:")
    k_head()
    for k in range(8):
        kread(k)
    for k in range(16):
        g("s_waitcnt lgkmcnt(%d)" % min(7, 15 - k))
        if k == 15:
            g("ds_write_b32 v4, v248 offset:%d" % O_FREE)
        g("v_mfma_f32_16x16x32_bf16 v[88:91], v[%d:%d], v[%d:%d], %s" % (
            96 + 4 * k, 99 + 4 * k, 16 + 4 * k, 19 + 4 * k, "0" if k == 0 else "v[88:91]"))
        if k < 8:
            kread(k + 8)
    ring_adv()
    g("s_nop 3")
    k_round()
    g("""
    s_sub_u32 s61, s9, 30
    s_cmp_lt_u32 s61, 3
    ds_write_b64 v228, v[230:231] offset:%d
    s_cbranch_scc0 L_k_nb
    """ % O_SC)
    stash_mul(1)
    g("""
    L_k_nb:
    s_cmp_lt_u32 s9, 64
    s_cbranch_scc1 L_k_loop
    v_mov_b32 v197, 1
    ds_write_b32 v4, v197 offset:%d
    """ % O_KDONE)
    MK = [(0x1111 << j) | (0x1111 << (16 + ((j + 1) & 3))) for j in range(4)]
    g("""
    s_lshl_b32 s61, s4, 11
    s_lshl_b32 s62, s5, 8
    s_add_u32 s62, s62, s61
    v_lshlrev_b32 v13, 4, v13
    v_lshl_add_u32 v13, v14, 3, v13
    v_add_u32 v13, s62, v13
    v_and_b32 v10, 7, v0
    v_lshlrev_b32 v11, 8, v10
    v_lshl_add_u32 v11, v14, 4, v11
    v_and_b32 v10, 8, v0
    v_lshl_add_u32 v11, v10, 3, v11
    v_add_u32 v11, s61, v11
    v_and_b32 v10, 3, v0
    v_lshl_add_u32 v9, v14, 3, v5
    v_lshlrev_b32 v9, 7, v9
    v_lshl_add_u32 v9, v10, 3, v9
    s_lshl_b32 s61, s3, 6
    s_add_u32 s61, s61, %d
    v_add_u32 v9, s61, v9
    v_and_b32 v8, 1, v14
    v_sub_u32 v10, v10, v8
    v_and_b32 v10, 3, v10
    v_lshl_add_u32 v8, v5, 2, v8
    v_lshrrev_b32 v7, 1, v14
    v_lshl_add_u32 v8, v7, 4, v8
    s_sub_u32 s62, s3, 1
    s_and_b32 s62, s62, 1
    s_lshl_b32 s61, s62, 7
    v_lshl_add_u32 v7, v8, 2, s61
    v_add_u32 v7, v7, v1
    s_lshl_b32 s61, s5, 1
    s_add_u32 s61, s61, s62
    s_lshl_b32 s62, s61, 6
    v_lshl_add_u32 v6, v8, 1, s62
    s_lshl_b32 s61, s61, 3
    v_add_u32 v60, s61, v14
    v_mul_u32_u24 v60, %d, v60
    v_lshl_add_u32 v60, v5, 4, v60
    v_add_u32 v60, %d, v60
    v_xor_b32 v8, 2, v10
    v_lshl_add_u32 v61, v8, 2, v60
    v_add_u32 v61, %d, v61
    v_lshl_add_u32 v60, v10, 2, v60
    """ % ((128 % NS) * SLOT - 64, ASTR, ACC, 4 * ASTR))
    for j in range(4):
        g("s_mov_b32 s%d, 0x%x" % (44 + 2 * j, MK[j]))
        g("s_mov_b32 s%d, s%d" % (45 + 2 * j, 44 + 2 * j))
    lds_wait_flag(O_PREADY, "v198", sleep=0)
    g("""
    ds_read_b64 v[66:67], v1 offset:%d
    v_cndmask_b32 v62, 0, 1.0, s[48:49]
    v_cndmask_b32 v63, 0, 1.0, s[44:45]
    s_waitcnt lgkmcnt(0)
    v_cndmask_b32 v64, 0, v66, s[44:45]
    v_cndmask_b32 v65, 0, v66, s[48:49]
    v_cndmask_b32 v64, v64, v67, s[46:47]
    v_cndmask_b32 v65, v65, v67, s[50:51]
    """ % O_G)

    g("L_v_loop:")
    g("""
    s_sub_u32 s61, s9, 64
    s_lshl_b32 s61, s61, 7
    v_add_u32 v196, s61, v3
    ds_read_b128 v[88:91], v196 offset:%d
    v_add_u32 v192, s10, v12
    s_lshl_b32 s15, s9, 2
    s_add_u32 s9, s9, 3
    v_add_u32 v248, 3, v248
    s_waitcnt lgkmcnt(0)
    """ % O_SC)
    diag_ops(88, 8, 160)
    g("""
    s_cmp_eq_u32 s9, 130
    s_cbranch_scc1 L_v_merge
    L_v_w0:
    """)
    if VT:
        for T in range(4):
            if T:
                g("s_add_u32 s15, s15, 1")
            wait_landed("v198")
            for r in range(4):
                d = 96 + 16 * T + 4 * r
                g("ds_read_b128 v[%d:%d], v192 offset:%d" % (d, d + 3, T * 4096 + 1024 * r))
            for r in range(4):
                d = 96 + 16 * T + 4 * r
                acc = 80 + 4 * (T & 1)
                A = 160 + 16 * (T >> 1) + 4 * r
                g("s_waitcnt lgkmcnt(%d)" % (3 - r))
                if r == 3 and T == 3:
                    g("ds_write_b32 v4, v248 offset:%d" % O_FREE)
                g("v_mfma_f32_16x16x32_bf16 v[%d:%d], v[%d:%d], v[%d:%d], v[%d:%d]" % (
                    acc, acc + 3, A, A + 3, d, d + 3, acc, acc + 3))
    else:
        for pr in range(2):
            g("s_add_u32 s15, s15, %d" % (1 + pr))
            wait_landed("v198")
            for r in range(4):
                for hf in range(2):
                    d = 96 + 32 * pr + 8 * r + 4 * hf
                    g("ds_read_b128 v[%d:%d], v192 offset:%d" % (d, d + 3, (2 * pr + hf) * 4096 + 1024 * r))
            k = 0
            for r in range(4):
                for hf in range(2):
                    d = 96 + 32 * pr + 8 * r + 4 * hf
                    acc = 80 + 4 * hf
                    A = 160 + 16 * pr + 4 * r
                    g("s_waitcnt lgkmcnt(%d)" % (7 - k))
                    if k == 7 and pr == 1:
                        g("ds_write_b32 v4, v248 offset:%d" % O_FREE)
                    g("v_mfma_f32_16x16x32_bf16 v[%d:%d], v[%d:%d], v[%d:%d], v[%d:%d]" % (
                        acc, acc + 3, A, A + 3, d, d + 3, acc, acc + 3))
                    k += 1
    ring_adv()
    g("""
    s_cmp_lt_u32 s9, 128
    s_cbranch_scc1 L_v_loop
    s_cmp_eq_u32 s9, 130
    s_nop 0
    """)
    for r in range(4):
        g("v_permlane32_swap_b32 v%d, v%d" % (84 + r, 88 + r))
    g("s_nop 1")
    for r in range(4):
        g("v_add_f32 v%d, v%d, v%d" % (80 + r, 80 + r, 88 + r))
    g("""
    s_mov_b32 exec_hi, 0
    s_cbranch_scc0 L_c_other
    """)
    if LOC:
        g("s_cmp_eq_u32 s58, 2")
    g("""
    v_mul_f32 v80, v80, v212
    v_mul_f32 v81, v81, v212
    v_mul_f32 v82, v82, v212
    v_mul_f32 v83, v83, v212
    v_cvt_pk_bf16_f32 v80, v80, v81
    v_cvt_pk_bf16_f32 v81, v82, v83
    v_min_u32 v80, -2, v80
    v_min_u32 v81, -2, v81
    """)
    if LOC:
        g("""
        s_cbranch_scc0 L_c_far
        global_store_dwordx2 v13, v[80:81], s[40:41]
        L_c_st:
        """)
    else:
        g("global_store_dwordx2 v13, v[80:81], s[40:41] sc1")
    g("""
    ds_write_b32 v1, v248 offset:%d
    s_mov_b32 exec_hi, -1
    """ % O_OST)
    stamp(4)
    g("s_branch L_hop1")

    if LOC:
        g("""
        L_c_far:
        global_store_dwordx2 v13, v[80:81], s[40:41] sc1
        s_branch L_c_st
        """)
    g("L_v_merge:")
    lastc = 127 % 3
    oth = [c for c in range(3) if c != lastc]
    g("""
    v_and_b32 v200, 0x1ff, v12
    v_add_u32 v200, v200, v1
    """)
    assert HB == 0 and lastc == 1
    lds_wait_flag(O_FOK, "v204", sleep=0)
    if LOC:
        g("s_mov_b32 s58, s61")
    lds_wait_sum3(O_PDONE, 2, 204)
    g("""
    ds_read_b128 v[204:207], v200 offset:%d
    ds_read_b128 v[208:211], v200 offset:%d
    ds_read_b32 v212, v1 offset:%d
    s_waitcnt lgkmcnt(0)
    """ % (O_SC + PSTR * oth[0], O_SC + PSTR * oth[1], O_F))
    for r in range(4):
        g("v_add_f32 v%d, v%d, v%d" % (204 + r, 204 + r, 208 + r))
    for r in range(4):
        g("v_add_f32 v%d, v%d, v%d" % (80 + r, 80 + r, 204 + r))
    g("s_branch L_v_w0")
    g("""
    L_c_other:
    s_sub_u32 s61, s3, 1
    s_mul_i32 s61, s61, %d
    v_add3_u32 v196, s61, v1, v12
    v_mov_b32 v197, 1
    ds_write_b128 v196, v[80:83] offset:%d
    ds_write_b32 v4, v197 offset:%d
    s_mov_b32 exec_hi, -1
    """ % (PSTR, O_SC, O_PDONE))
    g("""
    s_cmp_eq_u32 s3, 1
    s_cbranch_scc0 L_end
    """)
    lds_wait_flag(O_OST, "v198", sleep=0)
    g("L_hop1:")

    def oloads(k):
        g("global_load_dwordx4 v[%d:%d], v11, s[40:41] sc1" % (16 + 8 * k, 19 + 8 * k))
        g("global_load_dwordx4 v[%d:%d], v11, s[40:41] offset:128 sc1" % (20 + 8 * k, 23 + 8 * k))
    assert NH <= 3
    oloads(0)
    if OT:
        g("global_load_ushort v254, v6, s[36:37]")
    for half in range(2):
        g("s_mov_b32 s15, %d" % (513 + 2 * half))
        wait_landed("v198")
        if half + 1 < NH:
            oloads(half + 1)
        for j in (2 * half, 2 * half + 1):
            for t in range(2):
                for hh in range(2):
                    d = 96 + 16 * t + 4 * j + 2 * hh
                    g("ds_read_b64_tr_b16 v[%d:%d], v9 offset:%d" % (d, d + 1, 4096 * j + 512 * hh + 32 * t))
    if diag == 4:
        stamp(10, 1)
    g("s_mov_b32 s60, 0")
    g("L_h_poll:")
    for k in range(NH):
        g("s_waitcnt vmcnt(%d)" % (2 * (NH - 1)))
        check_valid(["v%d" % i for i in range(16 + 8 * k, 24 + 8 * k)], "v58", "L_h_ok%d" % k)
        if H1S:
            g("s_sleep %d" % H1S)
        oloads(k)
    spin_guard("L_h_poll")
    for k in range(NH - 1, -1, -1):
        g("L_h_ok%d:" % k)
        g("s_waitcnt lgkmcnt(0)")
        stamp(5, 1)
        for jj in range(2):
            for t in range(2):
                for bb in range(2):
                    acc = 40 + 8 * t + 4 * bb
                    B = 96 + 16 * t + 4 * (2 * jj + bb)
                    g("v_mfma_f32_16x16x32_bf16 v[%d:%d], v[%d:%d], v[%d:%d], %s" % (
                        acc, acc + 3, 16 + 8 * k + 4 * jj, 19 + 8 * k + 4 * jj, B, B + 3, "0" if jj == 0 else "v[%d:%d]" % (acc, acc + 3)))
        if k:
            g("s_branch L_h_red")
    g("L_h_red:")
    g("""
    s_mov_b32 vcc_lo, -1
    s_mov_b32 vcc_hi, 0
    s_nop 1
    ds_read2_b32 v[66:67], v7 offset0:%d offset1:%d
    v_add_f32 v40, v40, v41
    v_add_f32 v42, v42, v43
    v_add_f32 v44, v44, v45
    v_add_f32 v46, v46, v47
    v_add_f32 v48, v48, v49
    v_add_f32 v50, v50, v51
    v_add_f32 v52, v52, v53
    v_add_f32 v54, v54, v55
    v_cndmask_b32 v40, v44, v40, vcc
    v_cndmask_b32 v42, v46, v42, vcc
    v_cndmask_b32 v48, v52, v48, vcc
    v_cndmask_b32 v50, v54, v50, vcc
    v_add_f32 v40, v40, v42
    v_add_f32 v48, v48, v50
    s_nop 1
    v_permlane32_swap_b32 v40, v48
    s_nop 0
    v_add_f32 v56, v40, v48
    v_add_f32 v58, v40, v48
    s_waitcnt lgkmcnt(0)
    v_max_u32 v57, v66, v67
    v_permlane16_swap_b32 v56, v58
    v_cmp_eq_u32 vcc, -1, v57
    v_add_f32 v56, v56, v58
    s_cbranch_vccnz L_h_bw
    L_h_bok:
    v_cndmask_b32 v62, v62, v66, s[46:47]
    v_cndmask_b32 v63, v63, v67, s[50:51]
    v_cndmask_b32 v62, v62, v56, s[44:45]
    v_cndmask_b32 v63, v63, v56, s[48:49]
    global_atomic_add_f32 v66, v60, v62, s[40:41] sc0 sc1
    global_atomic_add_f32 v67, v61, v63, s[40:41] sc0 sc1
    """ % (O_B // 4, O_B // 4 + 2))
    stamp(6, 1)
    g("""
    s_mov_b32 s61, 0x41f80000
    s_waitcnt vmcnt(0)
    v_add_f32 v62, v62, v66
    v_add_f32 v63, v63, v67
    v_cmp_eq_f32 s[52:53], s61, v66
    v_cmp_eq_f32 s[54:55], s61, v67
    v_cvt_pk_bf16_f32 v62, v62, v63
    v_and_b32 v63, 0xffff0000, v62
    v_lshlrev_b32 v62, 16, v62
    v_mul_f32 v62, v62, v64
    v_mul_f32 v63, v63, v65
    v_cvt_pk_bf16_f32 v62, v62, v63
    v_and_b32 v63, 0xffff0000, v62
    v_lshlrev_b32 v62, 16, v62
    s_and_b64 s[52:53], s[52:53], s[48:49]
    v_add_f32_dpp v63, v63, v63 quad_perm:[1,0,3,2] row_mask:0xf bank_mask:0xf
    v_add_f32_dpp v62, v62, v62 quad_perm:[1,0,3,2] row_mask:0xf bank_mask:0xf
    s_and_b64 s[54:55], s[54:55], s[44:45]
    v_add_f32_dpp v63, v63, v63 quad_perm:[2,3,0,1] row_mask:0xf bank_mask:0xf
    v_add_f32_dpp v62, v62, v62 quad_perm:[2,3,0,1] row_mask:0xf bank_mask:0xf
    v_cvt_pk_bf16_f32 v62, v62, v63
    s_mov_b64 exec, s[52:53]
    s_cbranch_execz L_o_n0
    global_store_short v6, v62, s[36:37] OSPOL
    L_o_n0:
    s_mov_b64 exec, s[54:55]
    s_cbranch_execz L_o_n1
    global_store_short_d16_hi v6, v62, s[36:37] offset:4 OSPOL
    L_o_n1:
    """.replace("OSPOL", OS))
    stamp(7, 1)
    g("s_branch L_end")
    g("""
    L_h_bw:
    s_mov_b32 s60, 0
    L_h_bl:
    ds_read2_b32 v[66:67], v7 offset0:%d offset1:%d
    s_waitcnt lgkmcnt(0)
    v_max_u32 v58, v66, v67
    v_cmp_eq_u32 vcc, -1, v58
    s_cbranch_vccz L_h_bok
    """ % (O_B // 4, O_B // 4 + 2))
    spin_guard("L_h_bl")

    g("L_ctl:")
    if tune:
        g("""
        s_add_u32 s44, s40, %d
        s_addc_u32 s45, s41, 0
        s_load_dwordx4 s[48:51], s[44:45], 64
        s_waitcnt lgkmcnt(0)
        s_sub_u32 s48, s48, %d
        """ % (TUNE, F0))
    else:
        g("s_mov_b32 s48, %d" % (base8 - F0))
        g("s_mov_b32 s49, %d" % (bK - base8))
        g("s_mov_b32 s50, %d" % ka)
    g("""
    s_lshl_b32 s62, s4, %d
    s_add_u32 s62, s62, %d
    v_lshl_add_u32 v6, v0, 4, s62
    s_lshl_b32 s61, s6, 9
    s_add_u32 s62, s62, s61
    v_and_b32 v10, 15, v0
    v_and_b32 v11, 16, v0
    v_lshl_add_u32 v7, v10, 5, v11
    v_add_u32 v7, s62, v7
    s_mul_i32 s61, s7, %d
    s_lshl_b32 s8, 0x%x, s61
    v_min_u32 v12, -2, v12
    v_min_u32 v13, -2, v13
    v_min_u32 v14, -2, v14
    v_min_u32 v15, -2, v15
    """ % (12 - lr, QB, 16 // RD, ((1 << (16 // RD)) - 1) * 0x10001))
    lds_wait_ge(O_LANDED, "%d" % FLP, "v8", sleep=1)
    a = g.lab("fl"); b = g.lab("fld")
    g("""
    v_and_b32 v8, 7, v0
    v_lshlrev_b32 v9, 2, v8
    v_mul_u32_u24 v3, %d, v8
    v_add_u32 v3, %d, v3
    s_and_b32 s61, s2, 7
    s_mul_i32 s61, s61, %d
    s_add_u32 s61, s61, %d
    v_lshl_add_u32 v2, v0, 2, s61
    s_mov_b32 s60, 0
    """ % (RSTR, REF, RSTR, REF))
    g(a + ":")
    g("""
    global_load_dword v10, v9, s[38:39] sc1
    s_waitcnt vmcnt(0)
    v_cmp_eq_u32 vcc, 0, v10
    s_cbranch_vccz %s
    s_sleep 16
    """ % b)
    spin_guard(a)
    g(b + ":")
    g("""
    s_mov_b32 exec_lo, s8
    s_mov_b32 exec_hi, 0
    global_store_dwordx4 v7, v[12:15], s[40:41] sc1
    s_mov_b64 exec, -1
    """)
    g("""
    s_cmp_lt_u32 s42, %d
    s_cselect_b32 s14, s49, 0
    s_add_u32 s12, s14, s48
    v_mov_b32 v4, s12
    ds_write_b32 v1, v4 offset:%d
    """ % (0 if dbg & 1 else 28, O_WIN))
    lds_wait_ge(O_LANDED, "%d" % QG, "v8", sleep=1)
    a = g.lab("qg"); b = g.lab("qgd")
    g("s_mov_b32 s60, 0")
    g(a + ":")
    for j in range(QS // 2):
        g("global_load_dwordx4 v[%d:%d], v6, s[40:41] offset:%d sc1" % (16 + 4 * j, 19 + 4 * j, 1024 * j))
    g("s_waitcnt vmcnt(0)")
    check_valid(["v%d" % i for i in range(16, 16 + 2 * QS)], "v10", b)
    g("s_sleep 8")
    spin_guard(a)
    g(b + ":")
    for j in range(1, QS // 2):
        for r in range(4):
            g("v_add_f32 v%d, v%d, v%d" % (16 + r, 16 + r, 16 + 4 * j + r))
    xsum(["v%d" % (16 + r) for r in range(4)], ["v%d" % (20 + r) for r in range(4)], "v_permlane32_swap_b32")
    g("""
    v_cvt_pk_bf16_f32 v16, v16, v17
    v_cvt_pk_bf16_f32 v17, v18, v19
    v_and_b32 v8, 31, v0
    v_lshl_add_u32 v8, v8, 3, v1
    v_mov_b32 v10, 1
    ds_write_b64 v8, v[16:17] offset:%d
    ds_write_b32 v1, v10 offset:%d
    """ % (O_Q, O_QDONE))
    g("""
    ds_write_b32 v1, v10 offset:%d
    s_mov_b32 s7, %d
    s_and_b32 s9, s2, 7
    s_mul_i32 s9, s9, %d
    s_lshr_b32 s61, s2, 3
    s_add_u32 s9, s9, s61
    s_and_b32 s9, s9, 31
    s_mov_b32 s43, 0
    v_mov_b32 v5, %d
    L_t_loop:
    """ % (O_OK, 4 * c0, RM, -late))
    lds_wait_ge(O_LANDED, "s7", "v8", sleep=1)
    g("""
    s_memrealtime s[10:11]
    s_add_u32 s7, s7, %d
    s_waitcnt lgkmcnt(0)
    s_min_u32 s10, s10, -2
    v_mov_b32 v12, s10
    s_cmp_eq_u32 s9, 13
    s_cbranch_scc0 L_t_nr
    s_mov_b32 exec_lo, %d
    s_mov_b32 exec_hi, 0
    global_store_dword v2, v12, s[40:41] sc1
    s_mov_b64 exec, -1
    L_t_nr:
    """ % (4 * dly, -1 if FL else 1))
    lds_wait_ge(O_LANDED, "s7", "v8", sleep=2)
    g("""
    global_load_dword v4, v3, s[40:41] sc1
    v_add_u32 v2, %d, v2
    v_add_u32 v3, %d, v3
    s_cmp_lt_u32 s7, %d
    s_cselect_b32 s13, s14, 0
    s_add_u32 s13, s13, s48
    s_add_u32 s7, s7, %d
    s_waitcnt vmcnt(0)
    v_cmp_eq_u32 vcc, -1, v4
    v_sub_u32 v4, v12, v4
    s_nop 0
    v_cndmask_b32 v4, v4, v5, vcc
    """ % (8 * RSTR, 8 * RSTR, 4 * KEND, 4 * (per - dly)))
    rowred("v4", "v_add_u32", (1, 2, 4))
    g("""
    s_nop 0
    v_readfirstlane_b32 s12, v4
    s_max_i32 s12, s12, -100000
    s_min_i32 s12, s12, 100000
    s_lshl_b32 s15, s10, 3
    s_sub_u32 s15, s15, s12
    s_sub_u32 s46, s15, s43
    s_mov_b32 s43, s15
    s_mul_i32 s12, s12, s50
    s_ashr_i32 s12, s12, 11
    s_add_u32 s12, s12, s13
    v_mov_b32 v4, s12
    ds_write_b32 v1, v4 offset:%d
    s_cmp_le_u32 s7, %d
    s_cbranch_scc1 L_t_loop
    """ % (O_WIN, 4 * CP[-1]))
    if EG:
        p0 = 4 * (CP[-1] + dly + 2)
        g("""
        s_mul_i32 s46, s46, %d
        s_lshr_b32 s46, s46, 10
        s_sub_u32 s46, s46, %d
        s_lshl_b32 s43, s43, 5
        s_mul_i32 s61, s46, %d
        s_add_u32 s43, s43, s61
        s_lshl_b32 s46, s46, 1
        s_mov_b32 s7, %d
        L_e_loop:
        """ % (round(32 * 1024 / (4 * per)), EB, p0 - 4 * CP[-1], p0))
        lds_wait_ge(O_LANDED, "s7", "v8", sleep=1)
        g("""
        s_memrealtime s[10:11]
        s_add_u32 s7, s7, 2
        s_waitcnt lgkmcnt(0)
        s_lshl_b32 s12, s10, 8
        s_sub_u32 s12, s12, s43
        s_add_u32 s43, s43, s46
        s_ashr_i32 s12, s12, 5
        s_max_i32 s12, s12, -100000
        s_min_i32 s12, s12, 100000
        s_mul_i32 s12, s12, %d
        s_ashr_i32 s12, s12, 11
        s_add_u32 s12, s12, s48
        v_mov_b32 v4, s12
        ds_write_b32 v1, v4 offset:%d
        s_cmp_lt_u32 s7, 502
        s_cbranch_scc1 L_e_loop
        """ % (EG, O_WIN))
    g("s_branch L_end")

    def w2_addr():
        g("""
        v_lshrrev_b32 v10, 3, v0
        v_lshlrev_b32 v10, 13, v10
        v_and_b32 v23, 7, v0
        v_lshl_add_u32 v10, v23, 4, v10
        s_lshl_b32 s56, s42, 16
        s_lshl_b32 s57, s5, 7
        s_add_u32 s56, s56, s57
        s_add_u32 s57, s56, 4096
        """.replace("v23", "v23" if W2P else "v11"))

    def w2_loads():
        for u in range(8):
            g("buffer_load_dwordx4 v[%d:%d], v10, s[52:55], %s offen offset:%d %s" % (
                192 + 4 * u, 195 + 4 * u, "s56" if u < 4 else "s57", 1024 * (u & 3), wpol))

    def w2_mul():
        for u in range(8):
            g("s_waitcnt vmcnt(%d)" % (7 - u))
            g("v_mfma_f32_16x16x32_bf16 v[4:7], v[%d:%d], v[%d:%d], %s" % (
                160 + 4 * u, 163 + 4 * u, 192 + 4 * u, 195 + 4 * u, "0" if u == 0 else "v[4:7]"))
        g("s_nop 7")
        for r in range(4):
            g("v_permlane32_swap_b32 v%d, v%d" % (4 + r, 16 + r))
        g("s_nop 1")
        for r in range(4):
            g("v_add_f32_dpp v%d, v%d, v%d row_ror:8 row_mask:0xf bank_mask:0xf" % (4 + r, 16 + r, 4 + r))
        for r in range(4):
            g("v_min_u32 v%d, -2, v%d" % (4 + r, 4 + r))

    g("L_aux:")
    selectors()
    g("s_waitcnt lgkmcnt(0)")
    g("""
    v_mov_b32 v4, 0
    v_mov_b32 v5, 0
    v_mov_b32 v6, 0
    v_mov_b32 v7, 0
    s_mov_b32 s12, 0x%x
    s_cmp_lt_u32 s42, %d
    s_cbranch_scc0 L_a_gate
    s_mov_b32 s44, s28
    s_mov_b32 s45, s29
    s_mov_b32 s46, 0x1c0000
    s_mov_b32 s47, 0x20000
    s_mov_b32 s48, s30
    s_mov_b32 s49, s31
    s_mov_b32 s50, 0x1c0000
    s_mov_b32 s51, 0x20000
    s_mov_b32 s52, s32
    s_mov_b32 s53, s33
    s_mov_b32 s54, 0x1c0000
    s_mov_b32 s55, 0x20000
    v_lshrrev_b32 v10, 3, v0
    v_lshlrev_b32 v2, 7, v10
    v_and_b32 v11, 7, v0
    v_mul_u32_u24 v10, %d, v10
    v_lshl_add_u32 v3, v11, 4, v10
    s_lshl_b32 s8, s42, 7
    s_mov_b32 s7, %d
    """ % (LOG2E | 0x80000000, 0 if dbg & 1 else 28, 64 * 3584, 4 * FS))
    for r in range(12, 20):
        g("v_mov_b32 v%d, 0" % r)
    g("s_mov_b32 s9, 0")
    g("L_f_loop:")
    if FR:
        g("s_xor_b32 s10, s9, s5")
    else:
        g("s_mov_b32 s10, s9")
    g("""
    s_lshl_b32 s11, s10, 4
    v_add_u32 v9, s11, v2
    s_mul_i32 s10, s10, %d
    s_add_u32 s10, s10, s8
    """ % (8 * 3584))
    lds_wait_ge(O_LANDED, "s7", "v8", sleep=ASL)
    g("global_load_dwordx4 v[20:23], v9, s[16:17]")
    g("s_cmp_eq_u32 s9, 0")
    g("s_cbranch_scc1 L_f_first")
    for w_ in (FW, FW0):
        for u in range(8):
            if w_ < 16:
                g("s_waitcnt vmcnt(%d)" % (w_ - 1))
            g("buffer_load_dwordx4 v[%d:%d], v3, s[44:47], s10 offen %s" % (128 + 8 * u, 131 + 8 * u, fpol))
            if w_ < 16:
                g("s_waitcnt vmcnt(%d)" % (w_ - 1))
            g("buffer_load_dwordx4 v[%d:%d], v3, s[48:51], s10 offen %s" % (132 + 8 * u, 135 + 8 * u, fpol))
            g("s_add_u32 s10, s10, 3584")
        if w_ is FW and "L_f_first:" not in g.L:
            g("s_branch L_f_j")
            g("L_f_first:")
            if not W2P:
                w2_addr()
                w2_loads()
    g("""
    L_f_j:
    s_add_u32 s9, s9, 1
    s_add_u32 s7, s7, %d
    s_waitcnt vmcnt(16)
    """ % (4 * FD))
    diag_ops(20, 8, 64)
    g("s_waitcnt vmcnt(0)")
    for u in range(8):
        g("v_mfma_f32_16x16x32_bf16 v[12:15], v[%d:%d], v[%d:%d], v[12:15]" % (
            64 + 4 * u, 67 + 4 * u, 128 + 8 * u, 131 + 8 * u))
        g("v_mfma_f32_16x16x32_bf16 v[16:19], v[%d:%d], v[%d:%d], v[16:19]" % (
            64 + 4 * u, 67 + 4 * u, 132 + 8 * u, 135 + 8 * u))
    g("""
    s_cmp_lt_u32 s9, %d
    s_cbranch_scc1 L_f_loop
    s_nop 5
    """ % (1 if dbg & 32 else 8))
    assert FS + 7 * FD <= 60
    for r in range(8):
        g("v_permlane32_swap_b32 v%d, v%d" % (12 + r, 24 + r))
    g("s_nop 1")
    for r in range(8):
        g("v_add_f32_dpp v%d, v%d, v%d row_ror:8 row_mask:0xf bank_mask:0xf" % (12 + r, 24 + r, 12 + r))
    for r in range(8):
        rbf("v%d" % (12 + r))
    for r in range(4):
        g("v_mul_f32 v%d, s12, v%d" % (20 + r, 12 + r))
    for r in range(4):
        g("v_exp_f32 v%d, v%d" % (20 + r, 20 + r))
    g("s_nop 0")
    for r in range(4):
        g("v_add_f32 v%d, 1.0, v%d" % (20 + r, 20 + r))
    for r in range(4):
        g("v_rcp_f32 v%d, v%d" % (20 + r, 20 + r))
    g("s_nop 0")
    for r in range(4):
        g("v_mul_f32 v%d, v%d, v%d" % (12 + r, 12 + r, 20 + r))
    for r in range(4):
        rbf("v%d" % (12 + r))
    for r in range(4):
        g("v_mul_f32 v%d, v%d, v%d" % (12 + r, 12 + r, 16 + r))
    g("""
    v_cvt_pk_bf16_f32 v12, v12, v13
    v_cvt_pk_bf16_f32 v13, v14, v15
    v_lshrrev_b32 v9, 4, v0
    v_lshlrev_b32 v8, 4, v11
    v_lshl_add_u32 v8, v9, 3, v8
    v_add_u32 v8, v8, v1
    v_lshrrev_b32 v9, 3, v0
    v_lshl_add_u32 v9, v9, 4, v1
    s_mov_b32 exec_lo, 0x00ff00ff
    s_mov_b32 exec_hi, 0
    ds_write_b64 v8, v[12:13] offset:%d
    s_mov_b64 exec, -1
    s_waitcnt lgkmcnt(0)
    ds_read_b128 v[20:23], v9 offset:%d
    s_waitcnt lgkmcnt(0)
    """ % (O_H, O_H))
    diag_ops(20, 8, 160)
    if W2P:
        for r in range(4):
            g("v_mov_b32 v%d, -1" % (4 + r))
    else:
        g("s_nop 0")
        w2_mul()
    g("""
    L_a_gate:
    v_lshlrev_b32 v9, 4, v0
    global_load_dwordx4 v[20:23], v9, s[16:17]
    global_load_dwordx4 v[24:27], v9, s[34:35]
    s_waitcnt vmcnt(0)
    """)
    for r in range(4):
        g("v_lshlrev_b32 v%d, 16, v%d" % (28 + 2 * r, 20 + r))
        g("v_and_b32 v%d, 0xffff0000, v%d" % (29 + 2 * r, 20 + r))
        g("v_lshlrev_b32 v%d, 16, v%d" % (36 + 2 * r, 24 + r))
        g("v_and_b32 v%d, 0xffff0000, v%d" % (37 + 2 * r, 24 + r))
    for r in range(8):
        g("v_mul_f32 v%d, v%d, v%d" % (28 + r, 28 + r, 36 + r))
    for r in range(8):
        rbf("v%d" % (28 + r))
    for r in range(4):
        g("v_add_f32 v%d, v%d, v%d" % (28 + r, 28 + r, 32 + r))
    g("""
    v_add_f32 v28, v28, v29
    v_add_f32 v30, v30, v31
    v_add_f32 v28, v28, v30
    """)
    rowred("v28", "v_add_f32", (1, 2, 4, 8))
    xsum(["v28"], ["v29"], "v_permlane16_swap_b32")
    xsum(["v28"], ["v29"], "v_permlane32_swap_b32")
    rbf("v28")
    g("""
    v_mul_f32 v28, s12, v28
    v_exp_f32 v28, v28
    s_nop 0
    v_add_f32 v28, 1.0, v28
    v_rcp_f32 v2, v28
    s_nop 0
    """)
    rbf("v2")
    g("v_sub_f32 v3, 1.0, v2")
    rbf("v3")
    g("ds_write_b64 v1, v[2:3] offset:%d" % O_G)

    g("L_a_mid:")
    if diag == 1:
        stamp(10)
    g("""
    s_mov_b32 s12, 0x%x
    v_and_b32 v8, 7, v0
    v_and_b32 v9, 16, v0
    v_lshl_add_u32 v8, v8, 5, v9
    v_add_u32 v224, v8, v1
    s_mov_b64 exec, 0x00ff00ff
    ds_write_b128 v224, v[4:7] offset:%d
    s_mov_b64 exec, -1
    v_lshl_add_u32 v8, v0, 4, v1
    """ % (LOG2E, O_B))
    lds_wait_flag(O_OK, "v12", sleep=ASL)
    lds_wait_sum3(O_KDONE, 3, 12, sleep=1)
    for k in range(8):
        g("ds_read_b128 v[%d:%d], v8 offset:%d" % (16 + 4 * k, 19 + 4 * k, O_SC + 1024 * k))
    for k in range(8):
        g("s_waitcnt lgkmcnt(%d)" % (7 - k))
        for r in range(4):
            g("v_lshlrev_b32 v%d, 16, v%d" % (64 + 8 * k + 2 * r, 16 + 4 * k + r))
            g("v_and_b32 v%d, 0xffff0000, v%d" % (65 + 8 * k + 2 * r, 16 + 4 * k + r))
        for r in range(4):
            if k == 0 and r < 2:
                g("v_max_f32 v%d, v%d, v%d" % (12 + r, 64 + 2 * r, 65 + 2 * r))
            else:
                g("v_max3_f32 v%d, v%d, v%d, v%d" % (12 + (r & 1), 12 + (r & 1), 64 + 8 * k + 2 * r, 65 + 8 * k + 2 * r))
    g("v_max_f32 v12, v12, v13")
    rowred("v12", "v_max_f32", (1, 2, 4, 8))
    xsum(["v12"], ["v13"], "v_permlane16_swap_b32", "v_max_f32")
    xsum(["v12"], ["v13"], "v_permlane32_swap_b32", "v_max_f32")
    g("""
    v_mul_f32 v14, s12, v12
    v_mov_b32 v13, 0
    v_mov_b32 v15, 0
    """)
    for k in range(8):
        for r in range(8):
            g("v_fma_f32 v%d, v%d, s12, -v14" % (64 + 8 * k + r, 64 + 8 * k + r))
        for r in range(8):
            g("v_exp_f32 v%d, v%d" % (64 + 8 * k + r, 64 + 8 * k + r))
        for r in range(4):
            g("v_cvt_pk_bf16_f32 v%d, v%d, v%d" % (128 + 4 * k + r, 64 + 8 * k + 2 * r, 65 + 8 * k + 2 * r))
        g("ds_write_b128 v8, v[%d:%d] offset:%d" % (128 + 4 * k, 131 + 4 * k, O_SC + 1024 * k))
        for r in range(4):
            g("v_add_f32 v13, v13, v%d" % (64 + 8 * k + 2 * r))
            g("v_add_f32 v15, v15, v%d" % (65 + 8 * k + 2 * r))
    g("""
    v_mov_b32 v11, 1
    ds_write_b32 v1, v11 offset:%d
    v_add_f32 v13, v13, v15
    """ % O_PREADY)
    rowred("v13", "v_add_f32", (1, 2, 4, 8))
    xsum(["v13"], ["v15"], "v_permlane16_swap_b32")
    xsum(["v13"], ["v15"], "v_permlane32_swap_b32")
    a = g.lab("ml"); b = g.lab("mld")
    g("""
    s_lshl_b32 s62, s4, 11
    s_add_u32 s62, s62, %d
    s_lshl_b32 s63, s5, 8
    s_add_u32 s63, s63, s62
    v_lshl_add_u32 v11, v0, 4, s63
    XCC
    v_min_u32 v24, -2, v12
    v_min_u32 v25, -2, v13
    v_mov_b32 v26, s7
    v_mov_b32 v27, 0
    v_and_b32 v15, 7, v0
    v_lshl_add_u32 v15, v15, 8, s62
    s_mov_b64 exec, 0xff
    global_store_dwordx4 v11, v[24:27], s[40:41] sc1
    s_mov_b64 exec, -1
    """.replace("XCC", "s_getreg_b32 s7, hwreg(HW_REG_XCC_ID, 0, 24)" if LOC else "s_mov_b32 s7, 1") % ML)
    lds_wait_ge(O_LANDED, "%d" % (4 * MLP), "v18", sleep=8)
    g("s_mov_b32 s60, 0")
    g(a + ":")
    g("""
    global_load_dwordx3 v[18:20], v15, s[40:41] sc1
    s_waitcnt vmcnt(0)
    """)
    check_valid(["v18", "v19", "v20"], "v21", b)
    g("s_sleep 16")
    spin_guard(a)
    g(b + ":")
    if LOC:
        g("""
        v_cmp_ne_u32 vcc, s7, v20
        s_cmp_eq_u64 vcc, 0
        s_cselect_b32 s7, 2, 1
        """)
    g("v_mov_b32 v20, v18")
    rowred("v20", "v_max_f32", (1, 2, 4))
    g("""
    v_sub_f32 v21, v18, v20
    v_sub_f32 v22, v12, v20
    v_mul_f32 v21, s12, v21
    v_mul_f32 v22, s12, v22
    v_exp_f32 v21, v21
    v_exp_f32 v22, v22
    s_nop 0
    v_mul_f32 v21, v21, v19
    """)
    rowred("v21", "v_add_f32", (1, 2, 4))
    g("""
    v_rcp_f32 v21, v21
    v_mov_b32 v11, s7
    v_mul_f32 v22, v22, v21
    ds_write_b32 v1, v22 offset:%d
    ds_write_b32 v1, v11 offset:%d
    """ % (O_F, O_FOK))
    if PW:
        g("""
        s_lshl_b32 s62, s4, 11
        v_and_b32 v15, 15, v0
        v_lshl_add_u32 v15, v15, 7, s62
        """)
        lds_wait_ge(O_LANDED, "%d" % (4 * PW), "v18", sleep=8)
        g("global_load_dword v254, v15, s[40:41] sc1")
    if W2P and not dbg & 1:
        g("""
        s_cmp_lt_u32 s42, 28
        s_cbranch_scc0 L_end
        """)
        w2_addr()
        lds_wait_ge(O_LANDED, "%d" % W2P, "v18", sleep=1)
        w2_loads()
        w2_mul()
        g("""
        s_mov_b64 exec, 0x00ff00ff
        ds_write_b128 v224, v[4:7] offset:%d
        """ % O_B)
    g("L_end:")
    if cal >= 0 and stat:
        g("""
        s_cmp_eq_u32 s3, %d
        s_cbranch_scc0 L_exit
        s_mov_b64 exec, 1
        s_lshl_b32 s61, s2, 3
        s_add_u32 s61, s61, %d
        v_mov_b32 v2, s61
        v_mov_b32 v4, s98
        v_mov_b32 v5, s%d
        global_store_dwordx2 v2, v[4:5], s[40:41] sc1
        s_mov_b64 exec, -1
        s_cmp_eq_u32 s2, 0
        s_cbranch_scc0 L_exit
        s_mov_b32 s60, 0
        L_cal0:
        s_memrealtime s[62:63]
        s_waitcnt lgkmcnt(0)
        s_sub_u32 s62, s62, s98
        s_cmp_ge_u32 s62, 12000
        s_cbranch_scc1 L_cal1
        s_add_u32 s60, s60, 1
        s_cmp_lt_u32 s60, 100000
        s_cbranch_scc1 L_cal0
        L_cal1:
        v_lshlrev_b32 v2, 5, v0
        v_add_u32 v2, %d, v2
        global_load_dwordx4 v[4:7], v2, s[40:41] sc1
        global_load_dwordx4 v[8:11], v2, s[40:41] offset:16 sc1
        s_waitcnt vmcnt(0)
        """ % ({4: 2, 5: 1, 6: 1, 7: 1, 1: 1}.get(cal, 0), STAMP, 66 + 2 * cal, STAMP))
        for r in range(4, 12):
            g("v_subrev_u32 v%d, s98, v%d" % (r, r))
        op = {"max": "v_max_i32", "min": "v_min_i32", "mean": "v_add_u32"}[stat]
        for dst, o in ((4, "v_min_i32"), (5, op)):
            g("%s v%d, v%d, v%d" % (o, dst, dst, dst + 2))
            g("%s v%d, v%d, v%d" % (o, dst + 4, dst + 4, dst + 6))
            g("%s v%d, v%d, v%d" % (o, dst, dst, dst + 4))
            rowred("v%d" % dst, o, (1, 2, 4, 8))
            xsum(["v%d" % dst], ["v12"], "v_permlane16_swap_b32", o)
            xsum(["v%d" % dst], ["v12"], "v_permlane32_swap_b32", o)
        g("""
        s_nop 1
        v_readfirstlane_b32 s10, v4
        v_readfirstlane_b32 s11, v5
        s_ashr_i32 s11, s11, %d
        s_sub_u32 s11, s11, s10
        s_sub_u32 s11, s11, %d
        s_mul_i32 s11, s11, %d
        s_max_i32 s11, s11, 0
        s_min_i32 s11, s11, 30000
        s_add_u32 s61, s11, s10
        s_add_u32 s61, s61, 15000
        s_mov_b32 s60, 0
        L_cal:
        s_memrealtime s[62:63]
        s_waitcnt lgkmcnt(0)
        s_sub_u32 s62, s62, s98
        s_cmp_ge_u32 s62, s61
        s_cbranch_scc1 L_exit
        s_add_u32 s60, s60, 1
        s_cmp_lt_u32 s60, 100000
        s_cbranch_scc1 L_cal
        """ % (8 if stat == "mean" else 0, sub, mul))
    elif cal >= 0:
        g("""
        s_cmp_eq_u32 s%d, 0
        s_cbranch_scc1 L_exit
        s_sub_u32 s61, s%d, s98
        s_add_u32 s61, s61, 15000
        s_mov_b32 s60, 0
        L_cal:
        s_memrealtime s[62:63]
        s_waitcnt lgkmcnt(0)
        s_sub_u32 s62, s62, s98
        s_cmp_ge_u32 s62, s61
        s_cbranch_scc1 L_exit
        s_add_u32 s60, s60, 1
        s_cmp_lt_u32 s60, 100000
        s_cbranch_scc1 L_cal
        """ % (66 + 2 * cal, 66 + 2 * cal))
    if diag:
        g("""
        s_mov_b32 exec_lo, 1
        s_mov_b32 exec_hi, 0
        s_lshl_b32 s61, s2, 7
        s_add_u32 s61, s61, %d
        v_mov_b32 v2, s61
        """ % STAMP)
        for k in ((0, 3, 7, 8, 15) if diag == 2 else range(16)):
            lab = g.lab("st")
            g("""
            s_or_b32 s61, s%d, s%d
            s_cbranch_scc0 %s
            v_mov_b32 v4, s%d
            v_mov_b32 v5, s%d
            global_store_dwordx2 v2, v[4:5], s[40:41] offset:%d
            s_nop 1
            """ % (66 + 2 * k, 67 + 2 * k, lab, 66 + 2 * k, 67 + 2 * k, 8 * k))
            g(lab + ":")
    g("L_exit:")
    g("s_endpgm")

    out = HEADER
    out += "; @launch grid=(256,1,1) block=(384,1,1) lds=%d\n" % LDS_BYTES
    out += '.amdgcn_target "amdgcn-amd-amdhsa--gfx950"\n.text\n.globl %s_kernel\n.p2align 8\n.type %s_kernel,@function\n%s_kernel:\n' % (NAME, NAME, NAME)
    out += "\n".join(g.L) + "\n"
    out += """.section .rodata,"a"
.p2align 6
.amdhsa_kernel %s_kernel
  .amdhsa_next_free_vgpr 256
  .amdhsa_next_free_sgpr 102
  .amdhsa_accum_offset 256
  .amdhsa_group_segment_fixed_size 0
  .amdhsa_kernarg_size 104
  .amdhsa_user_sgpr_count 2
  .amdhsa_user_sgpr_kernarg_segment_ptr 1
  .amdhsa_system_sgpr_workgroup_id_x 1
  .amdhsa_float_denorm_mode_32 3
.end_amdhsa_kernel
""" % NAME
    return out


if __name__ == "__main__":
    for spec in sys.argv[1:]:
        kw = {}
        fn = None
        for kv in spec.split(","):
            k, v = kv.split("=")
            if k == "o":
                fn = v
                continue
            kw[k] = int(v) if v.lstrip('-').isdigit() else v.replace("+", " ").replace("none", "")
        if fn is None:
            fn = "k5_" + spec.replace(",", "_").replace("=", "").replace("+", "") + ".s"
        open(fn, "w").write(gen(**kw))
        print(fn)
```

```python
import gen5, sys
s = gen5.gen()
ref = open("cdna_kernels/%s.s.ref" % gen5.NAME).read().split("\n")
head = [l for l in ref if l.startswith(";   offset") or l.startswith("; Kernarg")]
body = s[s.index("; @launch"):]
launch, body = body.split("\n", 1)
DOC = """
;
;   waves 1-3  consumers, slot n belongs to wave 1 + n % 3.  K pass: scores by MFMA, rounded like the reference,
; by its wo columns -> float atomics add {a, b, count} per output column; the last arrival writes the output.
"""
C = {
 "L_notloader": "waves 1-5: wave 1 zeroes the LDS control words; s4 = head, s5 = split, s42 = FFN column group",
 "L_ld_slot": "loader, one slot: s9 = slots issued, s10 = ring offset, s11 = first slot that may not be issued yet,\ns15 = window (eighths, relative to the initial one) + dither, v14 = lane n holds the address of slot n,\nv7 = tiles issued; each body below keeps F loads in flight and publishes the number of landed tiles",
 "L_ld_full": "ring full (or limit stale): reread the consumers' release counters",
 "L_ld_turn": "after slot 63: switch to V (unswizzled); after slot 127: the wo slice, then drain",
 "L_q": "wave 5: partial q over 128 rows of wq (x on the diagonal of A, 4 rows x 256 B per load as B)",
 "L_cons": "consumers; wave 1 of workgroups 0-7 resets one eighth of the hand-off area and raises its flag",
 "L_c_nc": "byte selectors that put one bf16 on the diagonal; LDS read patterns; the first two slots of each consumer\nwait for q in registers so that their ring slots are free again",
 "L_k_loop": "K pass: 64 keys per slot, four tiles share one accumulator through column-masked copies of q;\nscore = bf16(bf16(q.k) * 128^-0.5)",
 "L_k_nb": "end of the K pass: addresses and lane roles of the final steps, then wait for the probabilities",
 "L_v_loop": "V pass: rows 0-7 / 8-15 of the A operand carry the probabilities of the even / odd tile",
 "L_v_merge": "owner of the last slot: fold in the other two consumers' sums while the slot is still in flight",
 "L_c_other": "other consumers: leave the partial sum in LDS",
 "L_hop1": "waves 1, 2: the eight O records are the rows of A, the wo slice (transposed LDS reads) is B",
 "L_h_red": "sum the rows; lanes of a quad carry {a, b, 1.0, 0} of one column",
 "L_h_bok": "the four values of a column travel in one 16-byte piece of one request; the quad that finds 31 earlier\narrivals holds the full sums: out = bf16(bf16(g * bf16(a)) + bf16((1 - g) * bf16(b)))",
 "L_h_bw": "b not in LDS yet",
 "L_ctl": "wave 5: wait for the reset flags, publish half of the partial q, gather the four partials",
 "L_t_loop": "window control: own clock at a stream position against the references' clocks at the same position",
 "L_aux": "wave 4: gate / up for 64 hidden units (8 rows x 128 B per load), paced by the stream position;\nthe first step is this workgroup's own eighth, the rest comes from L2",
 "L_a_gate": "g and 1 - g",
 "L_a_mid": "between the passes: max, exp, sum over the workgroup's 4096 scores; exchange (m, l) inside the head;\nfinally b = h w2 for this workgroup's 64 x 64 block",
}
out = []
for l in body.split("\n"):
    k = l[:-1] if l.endswith(":") else None
    if k in C:
        out += ["; " + x for x in C[k].split("\n")]
    out.append(l)
txt = "\n".join(head) + "\n" + launch + "\n" + "\n".join(out)
first = txt.index(".amdgcn_target")
second = txt.index("\n", first) + 1
txt = txt[:second] + DOC.lstrip("\n") + txt[second:]
open(sys.argv[1], "w").write(txt)
```
